```python
import torch

def _softmax(x, axis=-1):
    return torch.softmax(x, dim=axis)

def _gelu(x):
    return torch.nn.functional.gelu(x, approximate='tanh')

def _silu(x):
    return torch.nn.functional.silu(x)

def _sigmoid(x):
    return torch.sigmoid(x)

def _layernorm(x, axis=-1, eps=1e-05):
    m = x.mean(dim=axis, keepdim=True)
    v = x.var(dim=axis, keepdim=True, unbiased=False)
    return (x - m) / torch.sqrt(v + eps)

def _scatter_add(tgt, idx, src, axis=0):
    return tgt.clone().index_add_(axis, idx, src)

def _segment_sum(src, seg, n):
    out = torch.zeros((n,) + src.shape[1:], dtype=src.dtype)
    return out.index_add_(0, seg, src)

def _pad(x, pw):
    flat = tuple((v for pair in reversed(pw) for v in pair))
    return torch.nn.functional.pad(x, flat)
kernel_name = 'adaLN_cond__mha_block_cached__glu_gated_geglu__decode'

def setup_inputs():

    _w = lambda a: (lambda t: t.to(torch.bfloat16) if t.is_floating_point() else t)(torch.as_tensor(a))

    def _A_setup():
        B, Sq, D = (1, 1, 640)
        H, Sk, Dh = (32, 32768, 192)
        return {'x': _w((lambda *s: torch.randn(*s, dtype=torch.bfloat16) * 0.05)(B, Sq, D)), 'k_cache': _w((lambda *s: torch.randn(*s, dtype=torch.bfloat16) * 0.8)(B, H, Sk, Dh)), 'v_cache': _w((lambda *s: torch.randn(*s, dtype=torch.bfloat16) * 3.2)(B, H, Sk, Dh)), 'wq': _w((lambda *s: torch.randn(*s, dtype=torch.bfloat16) * 0.8)(D, H * Dh) * D ** (-0.5)), 'wo': _w((lambda *s: torch.randn(*s, dtype=torch.bfloat16) * 3.2)(H * Dh, D) * (H * Dh) ** (-0.5))}
    _A_in = _A_setup()

    def _B_setup():
        B, S, Dm, Df = (1, 1, 640, 1536)
        return {'x': _w((lambda *s: torch.randn(*s, dtype=torch.bfloat16) * 0.05)(B, S, Dm)), 'w_gate': _w((lambda *s: torch.randn(*s, dtype=torch.bfloat16) * 3.2)(Dm, Df) * Dm ** (-0.5)), 'w_up': _w((lambda *s: torch.randn(*s, dtype=torch.bfloat16) * 3.2)(Dm, Df) * Dm ** (-0.5)), 'w_down': _w((lambda *s: torch.randn(*s, dtype=torch.bfloat16) * 3.2)(Df, Dm) * Df ** (-0.5))}
    _B_in = _B_setup()
    return {'A_x': _A_in['x'], 'A_k_cache': _A_in['k_cache'], 'A_v_cache': _A_in['v_cache'], 'A_wq': _A_in['wq'], 'A_wo': _A_in['wo'], 'B_x': _B_in['x'], 'B_w_gate': _B_in['w_gate'], 'B_w_up': _B_in['w_up'], 'B_w_down': _B_in['w_down'], 'c': _w((lambda *s: torch.randn(*s, dtype=torch.bfloat16) * 0.4)(1, 640) * 8.0), 'w_mod': _w((lambda *s: torch.randn(*s, dtype=torch.bfloat16) * 0.4)(640, 6 * 640) * 640 ** (-0.5) * 8.0)}

def reference(A_x, A_k_cache, A_v_cache, A_wq, A_wo, B_x, B_w_gate, B_w_up, B_w_down, c, w_mod):

    def _A_ref(x, k_cache, v_cache, wq, wo):
        B, Sq, D = x.shape
        H, Dh = (32, 192)
        q = (lambda x, *d: x.permute(*d))((x @ wq).reshape(B, Sq, H, Dh), 0, 2, 1, 3)
        scores = torch.einsum('bhqd,bhkd->bhqk', q, k_cache) * Dh ** (-0.5)
        p = _softmax(scores, axis=-1)
        o = torch.einsum('bhqk,bhkd->bhqd', p, v_cache)
        return (lambda x, *d: x.permute(*d))(o, 0, 2, 1, 3).reshape(B, Sq, H * Dh) @ wo

    def _B_ref(x, w_gate, w_up, w_down):
        g = torch.einsum('bsd,df->bsf', x, w_gate)
        u = torch.einsum('bsd,df->bsf', x, w_up)
        h = _gelu(g) * u
        return torch.einsum('bsf,fd->bsd', h, w_down)
    x = A_x
    mod = (_silu(c) @ w_mod).reshape(c.shape[0], 6, 1, -1)
    sa, ca, ga, sb, cb, gb = (mod[:, 0].clone(), mod[:, 1].clone(), mod[:, 2].clone(), mod[:, 3].clone(), mod[:, 4].clone(), mod[:, 5].clone())
    h = _layernorm(x, axis=-1) * (1 + ca) + sa
    x = x + ga * _A_ref(h, A_k_cache, A_v_cache, A_wq, A_wo)
    h = _layernorm(x, axis=-1) * (1 + cb) + sb
    x = x + gb * _B_ref(h, B_w_gate, B_w_up, B_w_down)
    return x
```

```python
import re

TRANS = ("v_exp_f32", "v_log_f32", "v_rcp_f32", "v_rsq_f32", "v_sqrt_f32", "v_sin_f32", "v_cos_f32")

def regs_of(tok):
    tok = tok.strip()
    neg = tok.lstrip('-')
    if neg.startswith('abs(') or neg.startswith('|'):
        neg = neg.replace('abs(', '').replace(')', '').replace('|', '')
    t = neg
    m = re.fullmatch(r'([vsa])\[(\d+):(\d+)\]', t)
    if m:
        return {f"{m.group(1)}{i}" for i in range(int(m.group(2)), int(m.group(3)) + 1)}
    if re.fullmatch(r'[vsa]\d+', t):
        return {t}
    if t in ('vcc', 'vcc_lo', 'vcc_hi'):
        return {'vcc'}
    if t in ('exec', 'exec_lo', 'exec_hi'):
        return {'exec'}
    if t == 'm0':
        return {'m0'}
    return set()

class Ins:
    def __init__(self, text):
        self.text = text
        body = text.split(';')[0].strip()
        self.label = None
        self.op = None
        self.reads = set(); self.writes = set()
        self.kind = 'other'
        self.states = 1
        if body.endswith(':'):
            self.label = body[:-1]; self.kind = 'label'; self.states = 0
            return
        if not body or body.startswith('.'):
            self.kind = 'dir'; self.states = 0
            return
        parts = body.split(None, 1)
        self.op = op = parts[0]
        rest = parts[1] if len(parts) > 1 else ''
        ops = [o.strip() for o in re.split(r',(?![^\[]*\])', rest)] if rest else []
        mods = ''
        if ops:
            last = ops[-1].split(None, 1)
            if len(last) > 1:
                ops[-1] = last[0]; mods = last[1]
        self.ops = ops; self.mods = mods
        self.dpp = ('_dpp' in op) or ('row_' in mods) or ('quad_perm' in mods)
        R = lambda i: regs_of(ops[i]) if i < len(ops) else set()
        allsrc = lambda k: set().union(*[regs_of(o) for o in ops[k:]]) if len(ops) > k else set()
        self.target = None
        if op == 's_nop':
            self.kind = 'nop'; self.states = int(ops[0], 0) + 1
        elif op.startswith('v_mfma') or op.startswith('v_smfmac'):
            self.kind = 'mfma'; self.writes = R(0); self.A = R(1); self.B = R(2); self.C = R(3)
            self.reads = self.A | self.B | self.C
            self.passes = 8 if '32x32' in op else 4
        elif op.startswith('v_'):
            self.kind = 'valu'
            self.writes = R(0); self.reads = allsrc(1)
            if op.startswith(('v_fmac', 'v_dot2c', 'v_writelane')) or ('bank_mask' in mods and 'bank_mask:0xf' not in mods) or ('row_mask' in mods and 'row_mask:0xf' not in mods):
                self.reads |= R(0)
            if op.startswith('v_permlane'):
                self.reads |= R(0); self.writes |= R(1)
            if op.startswith('v_cndmask') and len(ops) == 3:
                self.reads.add('vcc')
            if op.startswith('v_cmpx'):
                self.writes.add('exec')
            if op.startswith('v_div_fmas'):
                self.reads.add('vcc')
            if op.startswith('v_div_scale'):
                self.writes |= R(1); self.reads = allsrc(2)
            self.trans = op.replace('_e32', '').replace('_e64', '') in TRANS
        elif op.startswith('ds_'):
            self.kind = 'ds'
            if op.startswith(('ds_read', 'ds_bpermute', 'ds_permute', 'ds_swizzle')) or '_rtn' in op:
                self.writes = R(0); self.reads = allsrc(1)
            else:
                self.reads = allsrc(0)
        elif op.startswith(('buffer_', 'global_')):
            self.kind = 'vmem'
            self.lds = (' lds' in ' ' + mods) or op.startswith('global_load_lds')
            self.store = ('store' in op) or ('atomic' in op and 'sc0' not in mods)
            if op in ('buffer_inv', 'buffer_wbl2'):
                pass
            elif self.lds:
                self.reads = allsrc(0) | {'m0'}
            elif 'load' in op or ('atomic' in op and 'sc0' in mods and op.startswith('global')):
                self.writes = R(0); self.reads = allsrc(1)
            else:
                self.reads = allsrc(0)
                if 'atomic' in op and 'sc0' in mods: self.writes = R(0)
            self.wide = self.store and ('x3' in op or 'x4' in op)
            if self.wide:
                self.data = R(0) if op.startswith('buffer') else R(1)
        elif op.startswith('s_'):
            self.kind = 'salu'
            if op in ('s_branch',) or op.startswith('s_cbranch'):
                self.kind = 'branch'; self.target = ops[0]
            elif op == 's_call_b64':
                self.kind = 'call'; self.target = ops[1]; self.writes = R(0)
            elif op == 's_setpc_b64':
                self.kind = 'ret'; self.reads = R(0)
            elif op == 's_endpgm':
                self.kind = 'end'
            elif op.startswith(('s_cmp', 's_bitcmp', 's_waitcnt', 's_barrier', 's_sleep', 's_setprio')):
                self.reads = allsrc(0)
            elif op.startswith(('s_load', 's_atomic', 's_memrealtime', 's_memtime', 's_buffer')):
                self.kind = 'smem'; self.writes = R(0); self.reads = allsrc(1)
            else:
                self.writes = R(0); self.reads = allsrc(1)
                if 'saveexec' in op: self.writes.add('exec')

def need(p, c):
    n = 0
    V = lambda s: {r for r in s if r[0] in 'va' and r != 'vcc'}
    S = lambda s: {r for r in s if (r[0] == 's') or r == 'vcc'}
    if p.kind == 'valu':
        pw = p.writes
        if c.kind == 'mfma' and V(pw) & c.reads: n = max(n, 2)
        if c.kind == 'mfma' and 'exec' in pw: n = max(n, 4)
        if c.kind == 'valu':
            if c.dpp and V(pw) & c.reads: n = max(n, 2)
            if c.dpp and 'exec' in pw: n = max(n, 5)
            if c.op.startswith('v_permlane') and V(pw) & c.reads: n = max(n, 2)
            if c.op.startswith(('v_readlane', 'v_readfirstlane')) and V(pw) & c.reads: n = max(n, 1)
            if S(pw) & c.reads:
                n = max(n, 4 if c.op.startswith(('v_readlane', 'v_writelane', 'v_div_fmas')) else 2)
            if p.trans and V(pw) & (c.reads): n = max(n, 1)
            if 'exec' in pw and c.op.startswith(('v_readlane', 'v_readfirstlane', 'v_writelane', 'v_permlane')): n = max(n, 4)
            if ('op_sel' in p.mods or 'sdwa' in p.op) and V(pw) & (c.reads | c.writes): n = max(n, 1)
        if p.trans and c.kind in ('ds', 'vmem', 'mfma') and V(pw) & c.reads: n = max(n, 1)
        if c.kind == 'vmem' and S(pw) & c.reads: n = max(n, 5)
        if c.kind in ('salu', 'branch', 'smem') and S(pw) & c.reads: n = max(n, 1)
    if p.kind == 'mfma':
        d = p.writes
        base = {4: 8, 8: 12}[p.passes]
        if c.kind == 'mfma':
            if d & (c.A | c.B): n = max(n, base)
            if d & c.C:
                if not (c.C == d and c.op == p.op): n = max(n, base - 2)
            elif d & c.writes and not (c.writes == d): n = max(n, base - 2)
        elif c.kind == 'valu':
            if d & (c.reads | c.writes): n = max(n, base)
            if p.C & c.writes: n = max(n, {4: 3, 8: 7}[p.passes])
        elif c.kind in ('ds', 'vmem'):
            if d & (c.reads | c.writes): n = max(n, base)
    if p.kind == 'salu' and 'm0' in p.writes:
        if (c.kind == 'vmem' and getattr(c, 'lds', False)) or (c.kind == 'valu' and 'm0' in c.reads): n = max(n, 1)
    if p.kind == 'vmem' and getattr(p, 'wide', False):
        if c.kind == 'valu' and p.data & c.writes: n = max(n, 2)
        elif c.kind in ('ds', 'vmem', 'mfma') and p.data & c.writes: n = max(n, 1)
    return n

MAXW = 12
def _cfg(ins):
    labels = {x.label: i for i, x in enumerate(ins) if x.label}
    preds = [[] for _ in ins]
    rets = [i for i, x in enumerate(ins) if x.kind == 'ret']
    for i, x in enumerate(ins):
        if i + 1 < len(ins) and not (x.kind in ('end', 'ret', 'call') or x.op == 's_branch'):
            preds[i + 1].append(i)
        if x.kind in ('branch', 'call'):
            preds[labels[x.target]].append(i)
        if x.kind == 'call' and i + 1 < len(ins):
            for r in rets: preds[i + 1].append(r)
    return preds

def pad(lines):
    ins = [Ins(l) for l in lines]
    preds = _cfg(ins)
    i = 0
    while i < len(ins):
        c = ins[i]
        if c.kind not in ('label', 'dir', 'nop'):
            worst = 0
            stack = [(p, 0) for p in preds[i]]
            seen = {}
            while stack:
                j, dist = stack.pop()
                if dist >= MAXW: continue
                if seen.get(j, 99) <= dist: continue
                seen[j] = dist
                p = ins[j]
                if p.kind not in ('label', 'dir', 'nop'):
                    nd = need(p, c)
                    if nd > dist: worst = max(worst, nd - dist)
                for q in preds[j]: stack.append((q, dist + p.states))
            if worst:
                ins.insert(i, Ins(f"  s_nop {worst-1}"))
                preds = _cfg(ins)
                i += 1
        i += 1
    return [x.text for x in ins]

class Asm:
    def __init__(self):
        self.L = []
        self.uid = 0
    def __call__(self, s):
        for l in s.strip('\n').split('\n'):
            l = l.rstrip()
            if not l.strip(): continue
            t = l.strip()
            self.L.append(t if t.endswith(':') or t.startswith('.') else '  ' + t)
    def lab(self, p='L'):
        self.uid += 1
        return f"{p}_{self.uid}"
```

```python
import sys, os
sys.path.insert(0, os.path.dirname(os.path.abspath(__file__)))
from asmlib import Asm, pad

NAME = "adaLN_cond__mha_block_cached__glu_gated_geglu__decode"

WS_EPOCH = 0
WS_CLR = 256
WS_CNT = 4096
WS_MP = 0x4000
WS_QP = 0x20000
WS_PO = 0x80000
WS_PML = 0xC0000
WS_MB = 0xC1000
WS_AP = 0xC4000
WS_GU = 0xC9000
WS_USED = 0x100000
WS_STAMP = 0x100000
L_PROG = 0
L_SB = 16
L_RB = 64
L_QV = 1152
L_HV = 1536
L_SV = 1792
L_XV = 2048
L_PART = 5120
L_ML = 11264
L_STAT = 11328
L_WM = 12288
L_WQ = 20480
L_STG = 51200
LDS_BYTES = 149504

END = 0x7FFFFFFF
OOB = 0x4000000
LOG2E = 0x3FB8AA3B
SCALE = 0x3D93CD3A
HEADBYTES = 32768 * 384

sX, sK, sV, sWQ, sWO, sGATE, sUP, sDOWN, sC, sWM, sOUT, sDBG, sWS = 4, 6, 8, 10, 12, 16, 18, 20, 22, 24, 26, 28, 30
WSR = "s[32:35]"; AR = "s[36:39]"; BR = "s[40:43]"; CR = "s[44:47]"
sH, sS, sTAG, sE = "s48", "s49", "s50", "s51"
sSPIN = "s68"


def gen(NSTAT=56, R=4, prof=False, SH=4, LA=1):
    a = Asm()
    PR = 512 - 8 * NSTAT
    assert NSTAT <= 64 and NSTAT >= R and NSTAT + PR + 1 <= 256
    STAMPV_S, STAMPV_H = 19, 63

    def stamp(i, v):
        if prof:
            a(f"""
            s_memrealtime s[98:99]
            s_waitcnt lgkmcnt(0)
            v_writelane_b32 v{v}, s98, {i}
            """)

    def stamp_dump(v):
        if prof:
            a(f"""
            s_mov_b64 exec, -1
            s_lshl_b32 s98, s2, 3
            s_add_u32 s98, s98, s3
            s_lshl_b32 s98, s98, 8
            s_add_u32 s98, s98, {WS_STAMP}
            v_lshlrev_b32 v1, 2, v0
            v_add_u32 v1, s98, v1
            global_store_dword v1, v{v}, s[{sWS}:{sWS+1}]
            s_waitcnt vmcnt(0)
            """)

    def spin_check():
        a(f"s_sub_u32 {sSPIN}, {sSPIN}, 1\ns_cbranch_scc1 L_fail")

    def srd(r, base, size):
        a(f"""
        s_mov_b32 s{r}, s{base}
        s_mov_b32 s{r+1}, s{base+1}
        s_mov_b32 s{r+2}, {size}
        s_mov_b32 s{r+3}, 0x20000
        """)

    def bf16_round1(v, t=None):
        a(f"v_cvt_pk_bf16_f32 v{v}, v{v}, v{v}\nv_and_b32 v{v}, 0xffff0000, v{v}")

    def bf16_round2(v0, v1):
        a(f"""
        v_cvt_pk_bf16_f32 v{v1}, v{v0}, v{v1}
        v_lshlrev_b32 v{v0}, 16, v{v1}
        v_and_b32 v{v1}, 0xffff0000, v{v1}
        """)

    def unpack2(src, lo, hi):
        assert lo != src
        a(f"v_lshlrev_b32 v{lo}, 16, v{src}\nv_and_b32 v{hi}, 0xffff0000, v{src}")

    def reduce64(vs):
        for m in ("row_ror:8 row_mask:0xf", "row_ror:4 row_mask:0xf", "row_ror:2 row_mask:0xf", "row_ror:1 row_mask:0xf",
                  "row_bcast:15 row_mask:0xa", "row_bcast:31 row_mask:0xc"):
            for v in vs:
                a(f"v_add_f32_dpp v{v}, v{v}, v{v} {m} bank_mask:0xf")

    def silu(x, t):
        a(f"""
        v_mul_f32 v{t}, 0x{0x80000000 | LOG2E:08x}, v{x}
        v_exp_f32 v{t}, v{t}
        v_add_f32 v{t}, 1.0, v{t}
        v_rcp_f32 v{t+1}, v{t}
        v_mul_f32 v{t+2}, v{x}, v{t+1}
        v_fma_f32 v{t}, -v{t+2}, v{t}, v{x}
        v_fma_f32 v{x}, v{t}, v{t+1}, v{t+2}
        v_cmp_class_f32 vcc, v{x}, 3
        v_cndmask_b32 v{x}, v{x}, v{t+2}, vcc
        """)

    def div_rn(q, n, d, r, t):
        a(f"""
        v_mul_f32 v{q}, v{n}, v{r}
        v_fma_f32 v{t}, -v{q}, v{d}, v{n}
        v_fmac_f32 v{q}, v{t}, v{r}
        """)

    def soft_barrier(idx):
        lab = a.lab("L_sb")
        a(f"""
        v_mov_b32 v1, {L_SB + 4*idx}
        v_mov_b32 v2, 1
        s_mov_b64 exec, 1
        ds_add_u32 v1, v2
        s_mov_b64 exec, -1
        {lab}:
        """)
        spin_check()
        a(f"""
        ds_read_b32 v2, v1
        s_waitcnt lgkmcnt(0)
        v_readfirstlane_b32 s52, v2
        s_cmp_lt_u32 s52, 4
        s_cbranch_scc1 {lab}
        """)

    def gemv(nkb, D, xaddr, wbase=64, tmp=32, ntmp=7):
        for i in range(min(ntmp, nkb)):
            a(f"ds_read_b128 v[{tmp+4*i}:{tmp+4*i+3}], v{xaddr} offset:{64*i}")
        for kb in range(nkb):
            outstanding = min(ntmp, nkb - kb) - 1
            t = tmp + 4 * (kb % ntmp)
            a(f"s_waitcnt lgkmcnt({outstanding})")
            c = "0" if kb == 0 else f"v[{D}:{D+3}]"
            a(f"v_mfma_f32_16x16x32_bf16 v[{D}:{D+3}], v[{wbase+4*kb}:{wbase+4*kb+3}], v[{t}:{t+3}], {c}")
            if kb + ntmp < nkb:
                a(f"ds_read_b128 v[{t}:{t+3}], v{xaddr} offset:{64*(kb+ntmp)}")

    a(f"""
    s_cmp_ge_u32 s2, 256
    s_cbranch_scc1 L_exit
    s_load_dwordx16 s[4:19], s[0:1], 0
    s_load_dwordx8 s[20:27], s[0:1], 64
    s_load_dwordx4 s[28:31], s[0:1], 96
    v_lshrrev_b32 v1, 6, v0
    v_and_b32 v0, 63, v0
    s_lshr_b32 {sH}, s2, 3
    v_readfirstlane_b32 s3, v1
    s_and_b32 {sS}, s2, 7
    s_mov_b32 {sSPIN}, 0x40000
    s_cmp_ge_u32 s3, 4
    s_cbranch_scc1 L_stream
    """)
    a("s_setprio 3")
    if prof: a(f"v_mov_b32 v{STAMPV_H}, 0")
    stamp(0, STAMPV_H)
    a(f"""
    v_lshrrev_b32 v3, 3, v0
    v_and_b32 v4, 7, v0
    v_lshrrev_b32 v5, 4, v0
    v_and_b32 v6, 15, v0
    v_lshrrev_b32 v7, 2, v6
    v_lshl_add_u32 v7, v5, 3, v7
    v_lshlrev_b32 v7, 7, v7
    v_and_b32 v8, 3, v6
    v_lshl_add_u32 v7, v8, 3, v7
    s_cmp_eq_u32 s3, 0
    s_cbranch_scc1 L_h0_issue
    """)
    a(f"""
    v_lshlrev_b32 v10, 2, v0
    v_mov_b32 v12, -1
    v_mov_b32 v13, -1
    v_mov_b32 v14, -1
    v_mov_b32 v15, -1
    s_cmp_eq_u32 s3, 2
    s_cbranch_scc1 L_init2
    s_cmp_eq_u32 s3, 3
    s_cbranch_scc1 L_init3
    s_lshl_b32 s52, {sS}, 2
    v_lshlrev_b32 v11, 5, v0
    v_add_u32 v11, s52, v11
    v_cmp_gt_u32 vcc, {NSTAT}, v0
    v_cndmask_b32 v11, v12, v11, vcc
    ds_write_b32 v10, v11 offset:{L_RB}
    ds_write_b32 v10, v12 offset:{L_RB+256}
    ds_write_b32 v10, v12 offset:{L_RB+512}
    ds_write_b32 v10, v12 offset:{L_RB+768}
    s_branch L_init_done
    L_init2:
    v_lshlrev_b32 v11, 4, v0
    ds_write_b128 v11, v[12:15] offset:{L_QV}
    s_branch L_init_done
    L_init3:
    v_lshlrev_b32 v11, 2, v6
    v_mov_b32 v12, 0
    ds_write_b32 v11, v12 offset:0
    L_init_done:
    v_mul_u32_u24 v9, 12288, v3
    v_lshl_add_u32 v9, v4, 4, v9
    s_sub_u32 s53, s3, 1                  ; t
    s_mul_i32 s54, {sS}, {80*12288}
    s_mul_i32 s55, {sH}, 384
    s_add_u32 s54, s54, s55
    s_lshl_b32 s55, s53, 7
    s_add_u32 s54, s54, s55
    s_mul_i32 s55, s53, 10240
    s_add_u32 s55, s55, {L_WQ}
    s_waitcnt lgkmcnt(0)
    s_load_dword {sE}, s[{sWS}:{sWS+1}], {WS_EPOCH}
    """)
    srd(32, sWS, WS_USED)
    srd(36, sWQ, 640 * 12288)
    a(f"""
    s_or_b32 s52, s53, {sS}
    s_cmp_lg_u32 s52, 0
    s_cbranch_scc1 L_nocnt
    s_lshl_b32 s52, {sH}, 8
    s_add_u32 s52, s52, {WS_CNT}
    v_mov_b32 v10, 0
    s_mov_b64 exec, 1
    buffer_store_dword v10, v10, {WSR}, s52 offen sc1
    s_mov_b64 exec, -1
    L_nocnt:
    s_mov_b32 m0, s55
    """)
    for m in range(10):
        a(f"buffer_load_dwordx4 v9, {AR}, s54 offen nt lds")
        if m < 9:
            a(f"s_add_u32 m0, m0, 1024\ns_add_u32 s54, s54, {8*12288}")
    a("s_barrier")
    stamp(1, STAMPV_H)
    a(f"""
    v_add_u32 v10, s55, v7
    v_lshrrev_b32 v11, 1, v5
    v_and_b32 v12, 1, v5
    v_lshlrev_b32 v11, 10, v11
    v_lshl_add_u32 v11, v12, 9, v11
    v_lshrrev_b32 v12, 2, v6
    v_lshl_add_u32 v11, v12, 7, v11
    v_lshl_add_u32 v11, v8, 3, v11
    v_add_u32 v11, s55, v11
    v_lshlrev_b32 v12, 4, v5
    v_lshlrev_b32 v13, 3, v5
    v_and_b32 v14, 1, v6
    v_cmp_eq_u32 s[64:65], 1, v14
    v_lshl_add_u32 v14, v5, 1, v6
    v_lshlrev_b32 v14, 4, v14
    v_lshlrev_b32 v15, 4, v0
    s_waitcnt vmcnt(0) lgkmcnt(0)
    s_mul_i32 {sTAG}, {sE}, 0x9E3779B1
    s_add_u32 {sTAG}, {sTAG}, 0x7F4A7C15
    """)
    stamp(2, STAMPV_H)
    n = 0
    for cb in range(4):
        for kb in range(2):
            for u in range(2):
                r = 64 + (cb * 2 + kb) * 4 + 2 * u
                a(f"ds_read_b64_tr_b16 v[{r}:{r+1}], v10 offset:{kb*4096 + u*512 + cb*32}")
                n += 1
        a(f"ds_read_b64_tr_b16 v[{96+2*cb}:{97+2*cb}], v11 offset:{8192 + cb*32}")
        if cb % 2 == 1: a("s_waitcnt lgkmcnt(0)")
    a(f"""
    s_mul_i32 s54, s2, 1536
    s_lshl_b32 s55, s53, 9
    s_add_u32 s56, s55, {WS_QP}
    s_add_u32 s54, s54, s56
    s_mul_i32 s55, {sH}, {8*1536}
    s_add_u32 s55, s55, s56
    v_mov_b32 v122, {sTAG}
    v_mov_b32 v123, {sTAG}
    v_mov_b32 v126, {sTAG}
    v_mov_b32 v127, {sTAG}
    v_mov_b32 v130, {sTAG}
    v_mov_b32 v131, {sTAG}
    v_mov_b32 v134, {sTAG}
    v_mov_b32 v135, {sTAG}
    L_hwait:
    """)
    spin_check()
    a(f"""
    ds_read_b128 v[16:19], v12 offset:{L_HV}
    ds_read_b128 v[20:23], v12 offset:{L_HV+64}
    ds_read_b64 v[24:25], v13 offset:{L_HV+128}
    s_waitcnt lgkmcnt(0)
    v_max3_u32 v26, v16, v17, v18
    v_max3_u32 v27, v19, v20, v21
    v_max3_u32 v28, v22, v23, v24
    v_max3_u32 v26, v26, v27, v25
    v_max_u32 v26, v26, v28
    v_cmp_eq_u32 vcc, -1, v26
    s_cbranch_vccnz L_hwait
    """)
    stamp(3, STAMPV_H)
    for kb in range(2):
        for cb in range(4):
            w = 64 + (cb * 2 + kb) * 4
            c = "0" if kb == 0 else f"v[{104+4*cb}:{107+4*cb}]"
            a(f"v_mfma_f32_16x16x32_bf16 v[{104+4*cb}:{107+4*cb}], v[{w}:{w+3}], v[{16+4*kb}:{19+4*kb}], {c}")
    for cb in range(4):
        a(f"v_mfma_f32_16x16x16_bf16 v[{104+4*cb}:{107+4*cb}], v[{96+2*cb}:{97+2*cb}], v[24:25], v[{104+4*cb}:{107+4*cb}]")
    for cb in range(4):
        d = 104 + 4 * cb; o = 120 + 4 * cb
        a(f"v_cndmask_b32 v{o}, v{d}, v{d+2}, s[64:65]\nv_cndmask_b32 v{o+1}, v{d+1}, v{d+3}, s[64:65]")
    a("s_mov_b32 exec_lo, 0x00030003\ns_mov_b32 exec_hi, 0x00030003")
    for cb in range(4):
        a(f"buffer_store_dwordx4 v[{120+4*cb}:{123+4*cb}], v14, {WSR}, s54 offen offset:{128*cb} sc1")
    a("s_mov_b32 exec_lo, -1\ns_mov_b32 exec_hi, 0")
    stamp(4, STAMPV_H)
    a("L_qpoll:")
    spin_check()
    a("s_mov_b32 s56, s55")
    for i in range(8):
        a(f"buffer_load_dwordx4 v[{64+4*i}:{67+4*i}], v15, {WSR}, s56 offen sc1")
        if i < 7: a("s_add_u32 s56, s56, 1536")
    a(f"v_mov_b32 v26, 0\ns_waitcnt vmcnt(0)")
    for i in range(8):
        a(f"v_bitop3_b32 v26, v26, v{66+4*i}, {sTAG} bitop3:0xf6")
    a("v_cmp_ne_u32 vcc, 0, v26\ns_cbranch_vccnz L_qpoll")
    for i in range(1, 8):
        a(f"v_add_f32 v64, v64, v{64+4*i}\nv_add_f32 v65, v65, v{65+4*i}")
    a(f"""
    s_lshl_b32 s52, s53, 7
    v_lshl_add_u32 v10, v0, 2, s52
    v_cvt_pk_bf16_f32 v64, v64, v65
    v_min_u32 v64, -2, v64
    ds_write_b32 v10, v64 offset:{L_QV}
    s_mov_b64 exec, -1
    """)
    stamp(5, STAMPV_H)
    a("s_branch L_mid")

    a(f"""
    L_h0_issue:
    v_mul_u32_u24 v9, 7680, v3
    v_lshl_add_u32 v9, v4, 4, v9
    v_lshlrev_b32 v10, 1, v0              ; 2l
    v_lshlrev_b32 v11, 2, v0              ; 4l
    s_mul_i32 s53, s2, 3277
    s_lshr_b32 s53, s53, 16               ; r = wg/20
    s_mul_i32 s54, s53, 20
    s_sub_u32 s54, s2, s54                ; c = wg%20
    s_mul_i32 s55, s53, {64*7680}
    s_lshl_b32 s56, s54, 7
    s_add_u32 s55, s55, s56
    s_lshl_b32 s56, s53, 7
    s_mul_i32 s57, {sS}, 160
    s_waitcnt lgkmcnt(0)
    s_load_dword {sE}, s[{sWS}:{sWS+1}], {WS_EPOCH}
    """)
    srd(36, sWM, 640 * 7680)
    srd(44, sC, 1280)
    a(f"""
    s_cmp_ge_u32 s2, 200
    s_cbranch_scc1 L_h0_nom
    buffer_load_ushort v16, v10, {CR}, s56 offen
    s_mov_b32 m0, {L_WM}
    """)
    for i in range(8):
        a(f"buffer_load_dwordx4 v9, {AR}, s55 offen nt lds")
        if i < 7:
            a(f"s_add_u32 m0, m0, 1024\ns_add_u32 s55, s55, {8*7680}")
    a("L_h0_nom:")
    srd(40, sX, 1280)
    for i in range(5):
        a(f"buffer_load_dword v{20+i}, v11, {BR}, 0 offen offset:{256*i}")
    a(f"buffer_load_dword v25, v11, {BR}, s57 offen")
    srd(32, sWS, WS_USED)
    a("s_barrier")
    stamp(1, STAMPV_H)
    a(f"""
    v_lshlrev_b32 v12, 4, v5
    v_add_u32 v13, {L_WM}, v7
    v_and_b32 v14, 1, v6
    v_cmp_eq_u32 s[64:65], 1, v14
    v_lshl_add_u32 v14, v5, 1, v6
    v_lshlrev_b32 v14, 4, v14
    s_mul_i32 s55, s53, 10240
    s_lshl_b32 s56, s54, 9
    s_add_u32 s55, s55, s56
    s_add_u32 s55, s55, {WS_MP}
    s_cmp_ge_u32 s2, 200
    s_cbranch_scc1 L_h0_nom2
    s_waitcnt vmcnt(14) lgkmcnt(0)
    v_lshlrev_b32 v16, 16, v16
    s_mul_i32 {sTAG}, {sE}, 0x9E3779B1
    s_add_u32 {sTAG}, {sTAG}, 0x7F4A7C15
    """)
    silu(16, 17)
    a(f"""
    v_cvt_pk_bf16_f32 v16, v16, v16
    ds_write_b16 v10, v16 offset:{L_SV}
    """)
    for q in range(4):
        a(f"v_mov_b32 v{122+4*q}, {sTAG}\nv_mov_b32 v{123+4*q}, {sTAG}")
    a(f"s_waitcnt vmcnt(6)")
    stamp(2, STAMPV_H)
    for kb in range(2):
        for cb in range(4):
            if kb == 1 and cb == 2: a("s_waitcnt lgkmcnt(8)")
            for u in range(2):
                r = 64 + (cb * 2 + kb) * 4 + 2 * u
                a(f"ds_read_b64_tr_b16 v[{r}:{r+1}], v13 offset:{kb*4096 + u*512 + cb*32}")
        if kb == 0:
            a(f"ds_read_b128 v[96:99], v12 offset:{L_SV}\nds_read_b128 v[100:103], v12 offset:{L_SV+64}")
    a("s_waitcnt lgkmcnt(8)")
    for kb in range(2):
        if kb == 1: a("s_waitcnt lgkmcnt(0)")
        for cb in range(4):
            w = 64 + (cb * 2 + kb) * 4
            c = "0" if kb == 0 else f"v[{104+4*cb}:{107+4*cb}]"
            a(f"v_mfma_f32_16x16x32_bf16 v[{104+4*cb}:{107+4*cb}], v[{w}:{w+3}], v[{96+4*kb}:{99+4*kb}], {c}")
    for cb in range(4):
        d = 104 + 4 * cb; o = 120 + 4 * cb
        a(f"v_cndmask_b32 v{o}, v{d}, v{d+2}, s[64:65]\nv_cndmask_b32 v{o+1}, v{d+1}, v{d+3}, s[64:65]")
    a("s_mov_b32 exec_lo, 0x00030003\ns_mov_b32 exec_hi, 0x00030003")
    for cb in range(4):
        a(f"buffer_store_dwordx4 v[{120+4*cb}:{123+4*cb}], v14, {WSR}, s55 offen offset:{128*cb} sc1")
    a(f"""
    s_mov_b64 exec, -1
    s_waitcnt vmcnt(4)
    s_branch L_h0_ln
    L_h0_nom2:
    s_waitcnt vmcnt(0) lgkmcnt(0)
    s_mul_i32 {sTAG}, {sE}, 0x9E3779B1
    s_add_u32 {sTAG}, {sTAG}, 0x7F4A7C15
    L_h0_ln:
    """)
    stamp(3, STAMPV_H)
    a(f"""
    s_mul_i32 s56, {sS}, 640
    s_add_u32 s56, s56, {WS_MP}
    v_lshlrev_b32 v15, 4, v0
    """)

    def mp_issue():
        a("s_mov_b32 exec_lo, -1\ns_mov_b32 exec_hi, 0xff\ns_mov_b32 s57, s56")
        for i in range(20):
            a(f"buffer_load_dwordx4 v[{64+4*i}:{67+4*i}], v15, {WSR}, s57 offen sc1")
            if i < 19: a("s_add_u32 s57, s57, 5120")
        a("s_mov_b64 exec, -1")
    mp_issue()
    for i in range(5):
        unpack2(20 + i, 30 + 2 * i, 31 + 2 * i)
    a("v_readfirstlane_b32 s58, v30")
    for i in range(10):
        a(f"v_subrev_f32 v{30+i}, s58, v{30+i}")
    a("v_add_f32 v40, v30, v31\nv_mul_f32 v41, v30, v30\nv_fmac_f32 v41, v31, v31")
    for i in range(2, 10):
        a(f"v_add_f32 v40, v40, v{30+i}\nv_fmac_f32 v41, v{30+i}, v{30+i}")
    reduce64([40, 41])
    a(f"""
    v_readlane_b32 s59, v40, 63
    v_readlane_b32 s60, v41, 63
    v_mov_b32 v42, 0x3acccccd             ; 1/640
    v_mul_f32 v40, s59, v42               ; S1/n
    v_mul_f32 v41, s60, v42               ; S2/n
    v_fma_f32 v41, -v40, v40, v41         ; var
    v_add_f32 v40, s58, v40               ; mean
    """)
    bf16_round2(40, 41)
    a("v_add_f32 v41, 0x3727c5ac, v41")
    bf16_round1(41)
    a("v_sqrt_f32 v41, v41")
    bf16_round1(41)
    a("v_rcp_f32 v42, v41")
    unpack2(25, 30, 31)
    a("v_sub_f32 v30, v30, v40\nv_sub_f32 v31, v31, v40")
    bf16_round2(30, 31)
    div_rn(32, 30, 41, 42, 34)
    div_rn(33, 31, 41, 42, 35)
    bf16_round2(32, 33)
    a("s_branch L_mpchk\nL_mppoll:")
    spin_check()
    mp_issue()
    a(f"L_mpchk:\nv_mov_b32 v26, 0\ns_waitcnt vmcnt(0)")
    for i in range(20):
        a(f"v_bitop3_b32 v26, v26, v{66+4*i}, {sTAG} bitop3:0xf6")
    a("""
    s_mov_b32 exec_hi, 0xff
    v_cmp_ne_u32 vcc, 0, v26
    s_mov_b64 exec, -1
    s_cbranch_vccnz L_mppoll
    """)
    stamp(4, STAMPV_H)
    for i in range(1, 10):
        for k in (0, 1, 4, 5):
            a(f"v_add_f32 v{64+k}, v{64+k}, v{64+8*i+k}")
    bf16_round2(64, 65)
    bf16_round2(68, 69)
    a("v_add_f32 v68, 1.0, v68\nv_add_f32 v69, 1.0, v69")
    bf16_round2(68, 69)
    a("v_mul_f32 v68, v32, v68\nv_mul_f32 v69, v33, v69")
    bf16_round2(68, 69)
    a(f"""
    v_add_f32 v68, v68, v64
    v_add_f32 v69, v69, v65
    v_cvt_pk_bf16_f32 v68, v68, v69
    v_min_u32 v68, -2, v68
    s_mov_b32 exec_hi, 0xff
    ds_write_b32 v11, v68 offset:{L_HV}
    s_mov_b64 exec, -1
    """)
    stamp(5, STAMPV_H)

    sROLE, sG, sK5, sID, sSTR, sSOF, sNB = "s69", "s70", "s71", "s72", "s73", "s74", "s75"
    a(f"""
    L_mid:
    s_setprio 0
    s_lshr_b32 {sG}, s2, 5
    s_and_b32 {sK5}, s2, 31
    s_mov_b32 {sROLE}, 0
    s_mov_b32 s39, 0x20000
    s_cmp_lt_u32 {sK5}, 10
    s_cbranch_scc1 L_r2
    s_cmp_lt_u32 {sK5}, 16
    s_cbranch_scc1 L_r3
    s_cmp_lt_u32 {sK5}, 18
    s_cbranch_scc1 L_r4
    s_cmp_eq_u32 {sK5}, 18
    s_cbranch_scc1 L_mid_done
    s_cmp_lt_u32 {sK5}, 24
    s_cbranch_scc1 L_r5
    s_cmp_eq_u32 s2, 24
    s_cbranch_scc0 L_mid_done
    """)
    a(f"""
    s_cmp_lg_u32 s3, 1
    s_cbranch_scc1 L_mid_done
    v_mov_b32 v12, -1
    v_mov_b32 v13, -1
    v_mov_b32 v14, -1
    v_mov_b32 v15, -1
    v_lshlrev_b32 v10, 4, v0
    s_mov_b32 s52, {WS_AP}
    L_clr:
    buffer_store_dwordx4 v[12:15], v10, {WSR}, s52 offen sc1
    s_add_u32 s52, s52, 1024
    s_cmp_lt_u32 s52, {WS_AP + 26*1024}
    s_cbranch_scc1 L_clr
    v_mov_b32 v11, {sTAG}
    v_mov_b32 v10, 0
    s_mov_b32 s52, {WS_CLR}
    s_waitcnt vmcnt(0)
    s_mov_b64 exec, 1
    buffer_store_dword v11, v10, {WSR}, s52 offen sc1
    s_mov_b64 exec, -1
    s_branch L_mid_done
    L_r2:
    s_mov_b32 {sROLE}, 2
    s_mov_b32 s36, s{sWO}
    s_mov_b32 s37, s{sWO+1}
    s_mov_b32 s38, {6144*1280}
    s_mov_b32 {sSTR}, 1280
    s_mul_i32 {sSOF}, {sG}, {768*1280}
    s_lshl_b32 s52, {sK5}, 7
    s_add_u32 {sSOF}, {sSOF}, s52
    s_mov_b32 {sNB}, 24
    s_branch L_stage
    L_r3:
    s_mov_b32 {sROLE}, 3
    s_mul_i32 {sID}, {sG}, 6
    s_add_u32 {sID}, {sID}, {sK5}
    s_sub_u32 {sID}, {sID}, 10
    s_cmp_ge_u32 {sID}, 24
    s_cselect_b32 s36, s{sUP}, s{sGATE}
    s_cselect_b32 s37, s{sUP+1}, s{sGATE+1}
    s_cselect_b32 s52, 24, 0
    s_mov_b32 s38, {640*3072}
    s_mov_b32 {sSTR}, 3072
    s_sub_u32 s52, {sID}, s52
    s_lshl_b32 {sSOF}, s52, 7
    s_mov_b32 {sNB}, 20
    s_branch L_stage
    L_r4:
    s_sub_u32 {sID}, {sK5}, 16
    s_lshl_b32 {sID}, {sID}, 3
    s_add_u32 {sID}, {sID}, {sG}
    s_cmp_ge_u32 {sID}, 10
    s_cbranch_scc1 L_mid_done
    s_mov_b32 {sROLE}, 4
    s_mov_b32 s36, s{sDOWN}
    s_mov_b32 s37, s{sDOWN+1}
    s_mov_b32 s38, {1536*1280}
    s_mov_b32 {sSTR}, 1280
    s_lshl_b32 {sSOF}, {sID}, 7
    s_mov_b32 {sNB}, 24
    s_branch L_stage
    L_r5:
    s_mov_b32 {sROLE}, 5
    s_mul_i32 {sID}, {sG}, 5
    s_add_u32 {sID}, {sID}, {sK5}
    s_sub_u32 {sID}, {sID}, 19
    s_mov_b32 s36, s{sWM}
    s_mov_b32 s37, s{sWM+1}
    s_mov_b32 s38, {640*7680}
    s_mov_b32 {sSTR}, 7680
    s_lshl_b32 {sSOF}, {sID}, 7
    s_add_u32 {sSOF}, {sSOF}, 2560
    s_mov_b32 {sNB}, 20
    """)
    srd(44, sC, 1280)
    a(f"""
    s_mul_i32 s52, s3, 320
    v_lshlrev_b32 v10, 3, v0
    buffer_load_dwordx2 v[12:13], v10, {CR}, s52 offen
    v_add_u32 v10, s52, v10
    s_waitcnt vmcnt(0)
    """)
    unpack2(12, 14, 15); unpack2(13, 16, 17)
    for i in range(4): silu(14 + i, 18)
    a(f"""
    v_cvt_pk_bf16_f32 v12, v14, v15
    v_cvt_pk_bf16_f32 v13, v16, v17
    s_mov_b32 exec_hi, 0xff
    ds_write_b64 v10, v[12:13] offset:{L_XV}
    s_mov_b64 exec, -1
    L_stage:
    v_mul_lo_u32 v9, {sSTR}, v3
    v_lshl_add_u32 v9, v4, 4, v9
    s_lshl_b32 s53, {sSTR}, 3
    s_mul_i32 s52, s53, s3
    s_add_u32 {sSOF}, {sSOF}, s52
    s_lshl_b32 s53, {sSTR}, 5
    s_lshl_b32 s54, s3, 5
    v_add_u32 v10, s54, v7
    v_add_u32 v10, {L_STG}, v10
    v_add_u32 v11, 0x10000, v10
    """)

    def stage_dma():
        lab = a.lab("L_dma")
        a(f"""
        s_lshl_b32 s52, s3, 10
        s_add_u32 m0, s52, {L_STG}
        s_mov_b32 s55, {sNB}
        {lab}:
        buffer_load_dwordx4 v9, {AR}, {sSOF} offen nt lds
        s_add_u32 m0, m0, 4096
        s_add_u32 {sSOF}, {sSOF}, s53
        s_sub_u32 s55, s55, 1
        s_cmp_lg_u32 s55, 0
        s_cbranch_scc1 {lab}
        s_waitcnt vmcnt(0) lgkmcnt(0)
        """)

    def stage_tr(wbase):
        for kb in range(24):
            for u in range(2):
                r = wbase + 4 * kb + 2 * u
                va, off = (10, kb * 4096 + u * 512) if kb < 16 else (11, (kb - 16) * 4096 + u * 512)
                a(f"ds_read_b64_tr_b16 v[{r}:{r+1}], v{va} offset:{off}")
            if kb % 4 == 3: a("s_waitcnt lgkmcnt(0)")
    stage_dma()
    soft_barrier(0)
    stage_tr(64)
    a(f"s_cmp_lg_u32 {sROLE}, 4\ns_cbranch_scc1 L_staged")
    soft_barrier(1)
    stage_dma()
    soft_barrier(2)
    stage_tr(160)
    a(f"""
    L_staged:
    v_lshlrev_b32 v12, 4, v5
    v_add_u32 v12, {L_XV}, v12
    s_cmp_lg_u32 {sROLE}, 5
    s_cbranch_scc1 L_not5
    """)
    gemv(20, 16, 12)
    a(f"""
    s_lshl_b32 s52, {sID}, 8
    s_lshl_b32 s53, s3, 6
    s_add_u32 s52, s52, s53
    s_add_u32 s52, s52, {WS_MB}
    v_lshlrev_b32 v10, 4, v5
    v_mov_b32 v22, {sTAG}
    v_mov_b32 v23, {sTAG}
    v_cvt_pk_bf16_f32 v20, v16, v17
    v_cvt_pk_bf16_f32 v21, v18, v19
    s_mov_b32 exec_lo, 0x00010001
    s_mov_b32 exec_hi, 0x00010001
    buffer_store_dwordx4 v[20:23], v10, {WSR}, s52 offen sc1
    s_mov_b64 exec, -1
    s_branch L_mid_done
    L_not5:
    """)
    a(f"""
    v_mov_b32 v10, 0
    s_mov_b32 s52, {WS_CLR}
    L_clrwait:
    """)
    spin_check()
    a(f"""
    s_sleep 8
    buffer_load_dword v13, v10, {WSR}, s52 offen sc1
    s_waitcnt vmcnt(0)
    v_cmp_ne_u32 vcc, {sTAG}, v13
    s_cbranch_vccnz L_clrwait
    s_cmp_eq_u32 {sROLE}, 2
    s_cbranch_scc1 L_mid_done
    """)
    srd(40, sX, 1280)
    a(f"""
    s_cmp_eq_u32 {sROLE}, 4
    s_cbranch_scc1 L_m4
    s_mul_i32 s52, s3, 640
    v_min_u32 v13, 39, v0
    v_lshlrev_b32 v13, 4, v13
    v_add_u32 v13, s52, v13               ; (160 w + 4p) * 4
    s_mov_b32 s53, {WS_MB + 2560}
    s_mov_b32 s54, {WS_MB + 5120}
    s_branch L_m34
    L_m4:
    s_lshl_b32 s52, {sID}, 8
    s_lshl_b32 s53, s3, 6
    s_add_u32 s52, s52, s53
    v_lshlrev_b32 v13, 4, v5
    v_add_u32 v13, s52, v13               ; (64 id + 16 w + 4 g) * 4
    s_mov_b32 s53, {WS_MB + 7680}
    s_mov_b32 s54, {WS_MB + 7680}
    L_m34:
    v_lshrrev_b32 v14, 1, v13
    s_mov_b32 s52, {WS_MB}
    buffer_load_dwordx2 v[28:29], v14, {BR}, 0 offen
    L_mbpoll:
    """)
    spin_check()
    a(f"""
    s_sleep 8
    buffer_load_dwordx4 v[16:19], v13, {WSR}, s52 offen sc1
    buffer_load_dwordx4 v[20:23], v13, {WSR}, s53 offen sc1
    buffer_load_dwordx4 v[24:27], v13, {WSR}, s54 offen sc1
    v_mov_b32 v15, 0
    s_waitcnt vmcnt(0)
    v_bitop3_b32 v15, v15, v18, {sTAG} bitop3:0xf6
    v_bitop3_b32 v15, v15, v22, {sTAG} bitop3:0xf6
    v_bitop3_b32 v15, v15, v26, {sTAG} bitop3:0xf6
    v_cmp_ne_u32 vcc, 0, v15
    s_cbranch_vccnz L_mbpoll
    """)
    unpack2(28, 44, 45); unpack2(29, 46, 47)
    unpack2(16, 48, 49); unpack2(17, 50, 51)
    unpack2(20, 52, 53); unpack2(21, 54, 55)
    unpack2(24, 56, 57); unpack2(25, 58, 59)
    for i in range(4): a(f"v_add_f32 v{56+i}, 1.0, v{56+i}")
    bf16_round2(56, 57); bf16_round2(58, 59)
    a("L_mid_done:")
    stamp(6, STAMPV_H)

    sKN, sEST, sN, sR = "s76", "s77", "s78", "s79"
    a(f"""
    s_cmp_lg_u32 s3, 0
    s_cbranch_scc1 L_b5
    s_lshl_b32 s52, {sH}, 8
    s_add_u32 s52, s52, {WS_CNT}
    s_add_u32 s60, s{sWS}, s52
    s_addc_u32 s61, s{sWS+1}, 0
    s_mov_b32 {sKN}, {L_RB + 4*NSTAT}
    s_mov_b32 {sEST}, -1
    v_mov_b32 v10, 0
    L_grab:
    """)
    spin_check()
    a(f"""
    s_sleep 2
    ds_read_b128 v[16:19], v10 offset:{L_PROG}
    s_waitcnt lgkmcnt(0)
    v_max3_u32 v16, v16, v17, v18
    v_max_u32 v16, v16, v19
    v_readfirstlane_b32 s52, v16
    s_add_u32 s52, s52, {4*LA}
    s_cmp_lt_u32 s52, {sKN}
    s_cbranch_scc1 L_grab
    s_cmp_lg_u32 {sEST}, -1
    s_cbranch_scc1 L_grab1
    s_load_dword {sEST}, s[60:61], 0 glc
    s_waitcnt lgkmcnt(0)
    L_grab1:
    s_min_u32 s52, {sEST}, {PR}
    s_sub_u32 s52, {PR}, s52
    s_lshr_b32 s52, s52, {SH}
    s_max_u32 {sN}, s52, 1
    s_mov_b32 {sR}, {sN}
    s_atomic_add {sR}, s[60:61], 0 glc
    s_waitcnt lgkmcnt(0)
    s_min_u32 s53, {sR}, {PR}
    s_sub_u32 s52, {PR}, s53
    s_min_u32 s52, s52, {sN}
    s_lshl_b32 s54, s53, 2
    s_add_u32 s54, s54, {32*NSTAT}
    v_lshlrev_b32 v16, 2, v0
    v_add_u32 v17, s54, v16
    v_add_u32 v16, {sKN}, v16
    s_add_u32 s55, s53, {sN}
    s_cmp_ge_u32 s55, {PR}
    s_cselect_b32 s56, 1, 0
    v_mov_b32 v18, {END}
    v_cmp_gt_u32 vcc, s52, v0
    v_cndmask_b32 v17, v18, v17, vcc
    s_add_u32 s57, s52, s56
    v_cmp_gt_u32 vcc, s57, v0
    s_and_saveexec_b64 s[58:59], vcc
    ds_write_b32 v16, v17
    s_mov_b64 exec, -1
    s_lshl_b32 s52, s52, 2
    s_add_u32 {sKN}, {sKN}, s52
    s_lshl_b32 s52, {sN}, 3
    s_add_u32 {sEST}, {sR}, s52
    s_cmp_eq_u32 s56, 0
    s_cbranch_scc1 L_grab
    s_waitcnt lgkmcnt(0)
    L_b5:
    s_setprio 3
    """)
    stamp(7, STAMPV_H)
    a("s_barrier")
    stamp(8, STAMPV_H)
    a(f"""
    s_cmp_lg_u32 s3, 0
    s_cbranch_scc1 L_t1_done
    v_lshlrev_b32 v10, 2, v0
    v_add_u32 v10, {L_PART}, v10
    v_mov_b32 v11, {L_ML}
    ds_read_b128 v[16:19], v11
    ds_read_b128 v[20:23], v11 offset:16
    """)
    T1R = [24 + i for i in range(20)] + [14, 15, 60, 61]
    for p in range(12):
        a(f"ds_read2st64_b32 v[{T1R[2*p]}:{T1R[2*p+1]}], v10 offset0:{2*p} offset1:{2*p+1}")
    a(f"""
    s_lshl_b32 s52, s2, 10
    s_add_u32 s52, s52, {WS_PO}
    s_lshl_b32 s53, s2, 4
    s_add_u32 s53, s53, {WS_PML}
    v_lshlrev_b32 v11, 4, v0
    s_waitcnt lgkmcnt(12)
    v_min3_f32 v8, v16, v18, v20
    v_min_f32 v8, v8, v22                 ; NMmin
    v_sub_f32 v16, v8, v16
    v_sub_f32 v18, v8, v18
    v_sub_f32 v20, v8, v20
    v_sub_f32 v22, v8, v22
    v_exp_f32 v16, v16
    v_exp_f32 v18, v18
    v_exp_f32 v20, v20
    v_exp_f32 v22, v22
    v_mul_f32 v9, v16, v17
    v_fmac_f32 v9, v18, v19
    v_fmac_f32 v9, v20, v21
    v_fmac_f32 v9, v22, v23               ; l
    s_waitcnt lgkmcnt(0)
    """)
    idx = lambda w, hi, t: T1R[6 * w + 3 * hi + t]
    for w in range(4):
        for t in range(3):
            a(f"v_add_f32 v{idx(w,0,t)}, v{idx(w,0,t)}, v{idx(w,1,t)}")
    for t in range(3):
        a(f"v_mul_f32 v{17+2*t}, v16, v{idx(0,0,t)}")
    for w in range(1, 4):
        for t in range(3):
            a(f"v_fmac_f32 v{17+2*t}, v{16+2*w}, v{idx(w,0,t)}")
    a(f"""
    v_mov_b32 v24, v17
    v_mov_b32 v25, v19
    v_mov_b32 v26, v21
    v_mov_b32 v27, {sTAG}
    v_mov_b32 v28, v8
    v_mov_b32 v29, v9
    v_mov_b32 v30, {sTAG}
    v_mov_b32 v31, {sTAG}
    buffer_store_dwordx4 v[24:27], v11, {WSR}, s52 offen sc1
    s_mov_b64 exec, 1
    buffer_store_dwordx4 v[28:31], v11, {WSR}, s53 offen sc1
    s_mov_b64 exec, -1
    L_t1_done:
    """)
    stamp(9, STAMPV_H)
    a(f"""
    s_cmp_eq_u32 {sROLE}, 3
    s_cbranch_scc1 L_t3
    s_cmp_eq_u32 {sROLE}, 4
    s_cbranch_scc1 L_t4
    s_cmp_eq_u32 {sROLE}, 2
    s_cbranch_scc0 L_hend
    """)
    a(f"""
    s_lshl_b32 s52, {sG}, 2
    s_add_u32 s52, s52, s3
    s_lshl_b32 s53, s52, 13
    s_add_u32 s53, s53, {WS_PO}
    s_lshl_b32 s54, s52, 7
    s_add_u32 s54, s54, {WS_PML}
    v_lshlrev_b32 v10, 4, v0
    v_lshlrev_b32 v11, 4, v4
    s_mov_b32 s55, 0xff
    L_t2poll:
    """)
    spin_check()
    a(f"buffer_load_dwordx4 v[48:51], v11, {WSR}, s54 offen sc1\ns_mov_b32 s56, s53")
    for i in range(8):
        lab = a.lab("L_t2s")
        a(f"""
        s_bitcmp1_b32 s55, {i}
        s_cbranch_scc0 {lab}
        buffer_load_dwordx4 v[{16+4*i}:{19+4*i}], v10, {WSR}, s56 offen sc1
        {lab}:
        s_add_u32 s56, s56, 1024
        """)
    a("s_mov_b32 s55, 0\ns_waitcnt vmcnt(0)")
    for i in range(8):
        a(f"""
        v_cmp_ne_u32 vcc, {sTAG}, v{19+4*i}
        s_cmp_lg_u64 vcc, 0
        s_cselect_b32 s56, {1<<i}, 0
        s_or_b32 s55, s55, s56
        """)
    a(f"""
    v_cmp_ne_u32 vcc, {sTAG}, v50
    s_cbranch_vccnz L_t2poll
    s_cmp_lg_u32 s55, 0
    s_cbranch_scc1 L_t2poll
    """)
    stamp(10, STAMPV_H)
    a(f"""
    v_min_f32_dpp v52, v48, v48 row_ror:4 row_mask:0xf bank_mask:0xf
    v_min_f32_dpp v52, v52, v52 row_ror:2 row_mask:0xf bank_mask:0xf
    v_min_f32_dpp v52, v52, v52 row_ror:1 row_mask:0xf bank_mask:0xf
    v_sub_f32 v52, v52, v48
    v_exp_f32 v52, v52
    v_mul_f32 v53, v52, v49
    v_add_f32_dpp v53, v53, v53 row_ror:4 row_mask:0xf bank_mask:0xf
    v_add_f32_dpp v53, v53, v53 row_ror:2 row_mask:0xf bank_mask:0xf
    v_add_f32_dpp v53, v53, v53 row_ror:1 row_mask:0xf bank_mask:0xf
    v_rcp_f32 v53, v53
    v_mul_f32 v52, v52, v53
    """)
    for i in range(8): a(f"v_readlane_b32 s{80+i}, v52, {i}")
    a("s_mul_i32 s52, s3, 384\nv_lshl_add_u32 v11, v0, 1, s52")
    for t in range(3): a(f"v_mul_f32 v{54+t}, s80, v{16+t}")
    for i in range(1, 8):
        for t in range(3): a(f"v_fmac_f32 v{54+t}, s{80+i}, v{16+4*i+t}")
    a(f"""
    v_cvt_pk_bf16_f32 v54, v54, v55
    v_cvt_pk_bf16_f32 v56, v56, v56
    ds_write_b16 v11, v54 offset:{L_XV}
    ds_write_b16_d16_hi v11, v54 offset:{L_XV+128}
    ds_write_b16 v11, v56 offset:{L_XV+256}
    s_mul_i32 s52, {sG}, 2560
    s_lshl_b32 s53, {sK5}, 8
    s_add_u32 s52, s52, s53
    s_lshl_b32 s53, s3, 6
    s_add_u32 s52, s52, s53
    s_add_u32 s52, s52, {WS_AP}
    v_lshlrev_b32 v10, 4, v5
    s_waitcnt lgkmcnt(0)
    s_barrier
    """)
    gemv(24, 16, 12)
    for i in range(4): a(f"v_min_u32 v{16+i}, -2, v{16+i}")
    a(f"""
    s_mov_b32 exec_lo, 0x00010001
    s_mov_b32 exec_hi, 0x00010001
    buffer_store_dwordx4 v[16:19], v10, {WSR}, s52 offen sc1
    """)
    stamp(11, STAMPV_H)
    a("s_branch L_hend")

    def ap_poll(tag):
        a(f"s_mov_b32 s55, 0xff\nL_ap{tag}:")
        spin_check()
        a(f"s_mov_b32 s56, {WS_AP}")
        for i in range(7):
            lab = a.lab("L_aps")
            a(f"""
            s_bitcmp1_b32 s55, {i}
            s_cbranch_scc0 {lab}
            buffer_load_dwordx4 v[{16+4*i}:{19+4*i}], v13, {WSR}, s56 offen sc1
            {lab}:
            s_add_u32 s56, s56, 2560
            """)
        lab = a.lab("L_aps")
        a(f"""
        s_bitcmp1_b32 s55, 7
        s_cbranch_scc0 {lab}
        buffer_load_dwordx4 v[8:11], v13, {WSR}, s56 offen sc1
        {lab}:
        s_mov_b32 s55, 0
        s_waitcnt vmcnt(0)
        """)
        for i in range(8):
            r = 16 + 4 * i if i < 7 else 8
            a(f"""
            v_max3_u32 v14, v{r}, v{r+1}, v{r+2}
            v_max_u32 v14, v14, v{r+3}
            v_cmp_eq_u32 vcc, -1, v14
            s_cmp_lg_u64 vcc, 0
            s_cselect_b32 s56, {1<<i}, 0
            s_or_b32 s55, s55, s56
            """)
        a(f"s_cmp_lg_u32 s55, 0\ns_cbranch_scc1 L_ap{tag}")
        for i in range(1, 8):
            r = 16 + 4 * i if i < 7 else 8
            for k in range(4): a(f"v_add_f32 v{16+k}, v{16+k}, v{r+k}")
        bf16_round2(16, 17); bf16_round2(18, 19)
        for k in range(4): a(f"v_mul_f32 v{16+k}, v{48+k}, v{16+k}")
        bf16_round2(16, 17); bf16_round2(18, 19)
        for k in range(4): a(f"v_add_f32 v{16+k}, v{44+k}, v{16+k}")
        bf16_round2(16, 17); bf16_round2(18, 19)

    a("L_t3:")
    ap_poll(3)
    stamp(10, STAMPV_H)
    a(f"""
    v_readfirstlane_b32 s58, v16
    v_cmp_gt_u32 vcc, 40, v0
    v_mov_b32 v26, 0
    """)
    for k in range(4):
        a(f"v_subrev_f32 v{20+k}, s58, v{16+k}")
    a("""
    v_add_f32 v24, v20, v21
    v_mul_f32 v25, v20, v20
    v_add_f32 v24, v24, v22
    v_fmac_f32 v25, v21, v21
    v_add_f32 v24, v24, v23
    v_fmac_f32 v25, v22, v22
    v_fmac_f32 v25, v23, v23
    v_cndmask_b32 v24, v26, v24, vcc
    v_cndmask_b32 v25, v26, v25, vcc
    """)
    reduce64([24, 25])
    a(f"""
    v_mul_f32 v26, 0x3bcccccd, v24        ; S1/160
    v_fma_f32 v25, -v26, v24, v25         ; M2 = S2 - S1^2/160
    v_add_f32 v24, s58, v26               ; wave mean
    s_lshl_b32 s52, s3, 3
    v_mov_b32 v27, s52
    s_mov_b32 exec_lo, 0
    s_mov_b32 exec_hi, 0x80000000
    ds_write_b64 v27, v[24:25] offset:{L_STAT}
    s_mov_b64 exec, -1
    v_mov_b32 v27, {L_STAT}
    s_waitcnt lgkmcnt(0)
    s_barrier
    ds_read_b128 v[28:31], v27
    ds_read_b128 v[32:35], v27 offset:16
    v_lshrrev_b32 v14, 1, v13
    s_waitcnt lgkmcnt(0)
    v_add_f32 v24, v28, v30
    v_add_f32 v25, v32, v34
    v_add_f32 v24, v24, v25
    v_mul_f32 v24, 0.25, v24              ; mean
    v_add_f32 v25, v29, v31
    v_add_f32 v26, v33, v35
    v_add_f32 v25, v25, v26               ; sum M2
    v_sub_f32 v28, v28, v24
    v_sub_f32 v30, v30, v24
    v_sub_f32 v32, v32, v24
    v_sub_f32 v34, v34, v24
    v_mul_f32 v26, v28, v28
    v_fmac_f32 v26, v30, v30
    v_fmac_f32 v26, v32, v32
    v_fmac_f32 v26, v34, v34
    v_mul_f32 v25, 0x3acccccd, v25        ; /640
    v_fmac_f32 v25, 0.25, v26             ; + 160/640 * sum (mean_w - mean)^2
    """.replace("0.25,", "0x3e800000,"))
    bf16_round2(24, 25)
    a("v_add_f32 v25, 0x3727c5ac, v25")
    bf16_round1(25)
    a("v_sqrt_f32 v25, v25")
    bf16_round1(25)
    a("v_rcp_f32 v26, v25")
    for k in range(4): a(f"v_sub_f32 v{16+k}, v{16+k}, v24")
    bf16_round2(16, 17); bf16_round2(18, 19)
    for k in range(4): div_rn(20 + k, 16 + k, 25, 26, 28 + k)
    bf16_round2(20, 21); bf16_round2(22, 23)
    for k in range(4): a(f"v_mul_f32 v{20+k}, v{20+k}, v{56+k}")
    bf16_round2(20, 21); bf16_round2(22, 23)
    for k in range(4): a(f"v_add_f32 v{20+k}, v{20+k}, v{52+k}")
    a(f"""
    v_cvt_pk_bf16_f32 v20, v20, v21
    v_cvt_pk_bf16_f32 v21, v22, v23
    s_mov_b32 exec_hi, 0xff
    ds_write_b64 v14, v[20:21] offset:{L_XV}
    s_mov_b64 exec, -1
    s_lshl_b32 s52, {sID}, 7
    s_lshl_b32 s53, s3, 5
    s_add_u32 s52, s52, s53
    s_add_u32 s52, s52, {WS_GU}
    v_lshlrev_b32 v10, 3, v5
    v_and_b32 v8, 3, v0
    v_cmp_eq_u32 s[58:59], 1, v8
    v_cmp_eq_u32 s[60:61], 2, v8
    v_cmp_eq_u32 s[62:63], 3, v8
    s_waitcnt lgkmcnt(0)
    s_barrier
    """)
    gemv(20, 16, 12)
    a(f"""
    s_cmp_ge_u32 {sID}, 24
    s_cbranch_scc1 L_t3up
    v_cndmask_b32 v16, v16, v17, s[58:59]
    v_cndmask_b32 v16, v16, v18, s[60:61]
    v_cndmask_b32 v16, v16, v19, s[62:63]
    """)
    bf16_round1(16)
    import struct
    f2u = lambda x: struct.unpack('<I', struct.pack('<f', x))[0]
    c1 = -2.0 * 0.7978845608028654 * 1.4426950408889634
    a(f"""
    v_mul_f32 v17, v16, v16
    v_mov_b32 v18, 0x{f2u(c1):08x}
    v_fmac_f32 v18, 0x{f2u(c1*0.044715):08x}, v17
    v_mul_f32 v17, v16, v18
    v_exp_f32 v17, v17
    v_add_f32 v17, 1.0, v17
    v_rcp_f32 v17, v17
    v_mul_f32 v16, v16, v17
    v_mov_b32_dpp v17, v16 quad_perm:[1,1,1,1] row_mask:0xf bank_mask:0xf
    v_mov_b32_dpp v18, v16 quad_perm:[2,2,2,2] row_mask:0xf bank_mask:0xf
    v_mov_b32_dpp v19, v16 quad_perm:[3,3,3,3] row_mask:0xf bank_mask:0xf
    L_t3up:
    v_cvt_pk_bf16_f32 v16, v16, v17
    v_cvt_pk_bf16_f32 v17, v18, v19
    v_min_u32 v16, -2, v16
    v_min_u32 v17, -2, v17
    s_mov_b32 exec_lo, 0x00010001
    s_mov_b32 exec_hi, 0x00010001
    buffer_store_dwordx2 v[16:17], v10, {WSR}, s52 offen sc1
    """)
    stamp(11, STAMPV_H)
    a("s_branch L_hend")
    a("L_t4:")
    ap_poll(4)
    stamp(10, STAMPV_H)
    for k in range(4): a(f"v_mov_b32 v{44+k}, v{16+k}")
    srd(44, sOUT, 1280)
    a(f"""
    s_lshl_b32 s52, s3, 10
    v_lshl_add_u32 v10, v0, 4, s52
    s_mov_b32 s53, {WS_GU}
    s_mov_b32 s54, {WS_GU + 3072}
    v_lshrrev_b32 v14, 1, v13
    s_cmp_eq_u32 s3, 3
    s_cbranch_scc1 L_t4b
    L_gupoll:
    """)
    spin_check()
    a(f"""
    buffer_load_dwordx4 v[16:19], v10, {WSR}, s53 offen sc1
    buffer_load_dwordx4 v[20:23], v10, {WSR}, s54 offen sc1
    s_waitcnt vmcnt(0)
    v_max3_u32 v24, v16, v17, v18
    v_max3_u32 v25, v19, v20, v21
    v_max3_u32 v24, v24, v22, v23
    v_max_u32 v24, v24, v25
    v_cmp_eq_u32 vcc, -1, v24
    s_cbranch_vccnz L_gupoll
    """)
    stamp(11, STAMPV_H)
    for k in range(4):
        unpack2(16 + k, 24, 25); unpack2(20 + k, 26, 27)
        a(f"v_mul_f32 v24, v24, v26\nv_mul_f32 v25, v25, v27\nv_cvt_pk_bf16_f32 v{16+k}, v24, v25")
    a(f"""
    ds_write_b128 v10, v[16:19] offset:{L_XV}
    s_waitcnt lgkmcnt(0)
    L_t4b:
    s_barrier
    """)
    gemv(48, 16, 12, tmp=20, ntmp=6)
    bf16_round2(16, 17); bf16_round2(18, 19)
    for k in range(4): a(f"v_mul_f32 v{16+k}, v{52+k}, v{16+k}")
    bf16_round2(16, 17); bf16_round2(18, 19)
    for k in range(4): a(f"v_add_f32 v{16+k}, v{44+k}, v{16+k}")
    a(f"""
    v_cvt_pk_bf16_f32 v16, v16, v17
    v_cvt_pk_bf16_f32 v17, v18, v19
    s_mov_b32 exec_lo, 0x00010001
    s_mov_b32 exec_hi, 0x00010001
    buffer_store_dwordx2 v[16:17], v14, {CR}, 0 offen
    s_or_b32 s52, {sID}, s3
    s_cmp_lg_u32 s52, 0
    s_cbranch_scc1 L_hend
    s_add_u32 s52, {sE}, 1
    v_mov_b32 v18, s52
    v_mov_b32 v19, 0
    s_mov_b64 exec, 1
    buffer_store_dword v18, v19, {WSR}, 0 offen
    L_hend:
    """)
    stamp(12, STAMPV_H)
    stamp_dump(STAMPV_H)
    a("s_endpgm")

    RING = 56
    D0, D1, ACC, Q = 20, 24, 28, 40
    sW, sOFF, sIDX, sEND, sV_ = "s52", "s53", "s54", "s55", "s56"
    a("L_stream:")
    if prof: a(f"v_mov_b32 v{STAMPV_S}, 0")
    stamp(0, STAMPV_S)
    a(f"""
    s_sub_u32 {sW}, s3, 4
    v_bfe_u32 v1, v0, 1, 3
    v_mul_u32_u24 v1, 384, v1
    v_and_b32 v2, 1, v0
    v_lshl_add_u32 v1, v2, 6, v1
    v_lshrrev_b32 v12, 4, v0
    v_lshl_add_u32 v1, v12, 4, v1
    v_add_u32 v2, 3072, v1
    v_lshrrev_b32 v3, 3, v0
    v_mul_u32_u24 v3, 384, v3
    v_and_b32 v13, 7, v0
    v_lshl_add_u32 v3, v13, 4, v3
    v_add_u32 v4, 3072, v3
    s_mul_i32 s57, {sH}, {HEADBYTES}
    s_mul_hi_u32 s58, {sH}, {HEADBYTES}
    s_lshl_b32 {sOFF}, {sS}, 2
    s_add_u32 {sOFF}, {sOFF}, {sW}
    s_mul_i32 {sOFF}, {sOFF}, 6144
    s_mov_b32 s38, {HEADBYTES}
    s_mov_b32 s39, 0x20000
    s_mov_b32 s42, {HEADBYTES}
    s_mov_b32 s43, 0x20000
    s_waitcnt lgkmcnt(0)
    s_add_u32 s36, s{sK}, s57
    s_addc_u32 s37, s{sK+1}, s58
    s_add_u32 s40, s{sV}, s57
    s_addc_u32 s41, s{sV+1}, s58
    s_barrier
    """)

    def kloads(slot):
        r0 = RING + 48 * slot
        for j in range(6):
            a(f"buffer_load_dwordx4 v[{r0+4*j}:{r0+4*j+3}], v{1+j//3}, {AR}, {sOFF} offen offset:{128*(j%3)} nt")

    def vloads(slot):
        r0 = RING + 48 * slot + 24
        for j in range(6):
            a(f"buffer_load_dwordx4 v[{r0+4*j}:{r0+4*j+3}], v{3+j//3}, {BR}, {sOFF} offen offset:{128*(j%3)} nt")
    for s in range(R):
        kloads(s); vloads(s)
        if s < R - 1: a(f"s_add_u32 {sOFF}, {sOFF}, {32*6144}")
    stamp(1, STAMPV_S)
    a(f"""
    v_and_b32 v14, 1, v0
    v_lshlrev_b32 v14, 4, v14
    v_mov_b32 v15, 0xffff
    v_lshlrev_b32 v14, v14, v15           ; 0xffff << 16*(l&1)
    v_lshrrev_b32 v13, 1, v13             ; (l&7)>>1
    v_mov_b32 v15, 0
    """)
    for r in range(4):
        a(f"v_cmp_eq_u32 vcc, {r}, v13\nv_cndmask_b32 v{5+r}, v15, v14, vcc")
    a(f"""
    v_mov_b32 v9, 0xff800000
    v_mov_b32 v10, 0x7f800000
    v_mov_b32 v11, 0
    """)
    for i in range(12): a(f"v_mov_b32 v{ACC+i}, 0")
    a(f"""
    s_lshl_b32 s57, {sW}, 2
    v_mov_b32 v18, s57
    s_mov_b32 {sIDX}, {L_RB + 4*R}
    s_mov_b32 {sEND}, 0
    v_mov_b32 v17, {sIDX}
    v_bfe_u32 v13, v0, 3, 1
    v_lshlrev_b32 v13, 6, v13
    v_lshl_add_u32 v13, v12, 4, v13
    ds_read_b32 v16, v17
    L_qwait:
    """)
    spin_check()
    a(f"""
    s_sleep 1
    ds_read_b128 v[{Q}:{Q+3}], v13 offset:{L_QV}
    ds_read_b128 v[{Q+4}:{Q+7}], v13 offset:{L_QV+128}
    ds_read_b128 v[{Q+8}:{Q+11}], v13 offset:{L_QV+256}
    s_waitcnt lgkmcnt(0)
    v_max3_u32 v14, v{Q}, v{Q+1}, v{Q+2}
    v_max3_u32 v15, v{Q+3}, v{Q+4}, v{Q+5}
    v_max3_u32 v14, v14, v{Q+6}, v{Q+7}
    v_max3_u32 v15, v15, v{Q+8}, v{Q+9}
    v_max3_u32 v14, v14, v{Q+10}, v{Q+11}
    v_max_u32 v14, v14, v15
    v_cmp_eq_u32 vcc, -1, v14
    s_cbranch_vccnz L_qwait
    """)
    stamp(2, STAMPV_S)
    W = 12 * (R - 1) + 6
    a("L_loop:")
    for s in range(R):
        k0 = RING + 48 * s; v0 = k0 + 24
        a(f"s_waitcnt vmcnt({W})")
        for t in range(3):
            for u in range(2):
                d = D0 if u == 0 else D1
                c = "0" if t == 0 else f"v[{d}:{d+3}]"
                kr = k0 + 12 * u + 4 * t
                a(f"v_mfma_f32_16x16x32_bf16 v[{d}:{d+3}], v[{kr}:{kr+3}], v[{Q+4*t}:{Q+4*t+3}], {c}")
        a(f"""
        s_waitcnt lgkmcnt(0)
        v_readfirstlane_b32 {sV_}, v16
        s_cmp_eq_u32 {sV_}, -1
        s_cbranch_scc1 L_rbw{s}
        L_rbok{s}:
        s_add_u32 s57, {sV_}, {sW}
        s_mul_i32 s57, s57, 6144
        s_cmp_eq_u32 {sV_}, {END}
        s_cselect_b32 {sOFF}, 0, s57
        s_cselect_b32 s38, 0, s38
        s_cselect_b32 s42, 0, s42
        s_cselect_b32 s57, 0, 4
        s_addc_u32 {sEND}, {sEND}, 0
        s_add_u32 {sIDX}, {sIDX}, s57
        v_mov_b32 v17, {sIDX}
        """)
        kloads(s)
        a(f"""
        ds_read_b32 v16, v17
        ds_write_b32 v18, v17
        v_add_f32_dpp v12, v{D0+1}, v{D0} row_ror:8 row_mask:0xf bank_mask:0x3
        v_add_f32_dpp v13, v{D1+1}, v{D1} row_ror:8 row_mask:0xf bank_mask:0x3
        v_add_f32_dpp v12, v{D0+2}, v{D0+3} row_ror:8 row_mask:0xf bank_mask:0xc
        v_add_f32_dpp v13, v{D1+2}, v{D1+3} row_ror:8 row_mask:0xf bank_mask:0xc
        """)
        bf16_round2(12, 13)
        a(f"v_mul_f32 v12, 0x{SCALE:08x}, v12\nv_mul_f32 v13, 0x{SCALE:08x}, v13")
        bf16_round2(12, 13)
        a(f"""
        v_max_f32 v15, v12, v13
        v_cmp_gt_f32 vcc, v15, v9
        s_cbranch_vccz L_nr{s}
        s_call_b64 s[66:67], L_rare
        L_nr{s}:
        v_fmamk_f32 v12, v12, 0x{LOG2E:08x}, v10
        v_fmamk_f32 v13, v13, 0x{LOG2E:08x}, v10
        v_exp_f32 v12, v12
        v_exp_f32 v13, v13
        v_add_f32 v11, v11, v12
        v_cvt_pk_bf16_f32 v14, v12, v12
        v_cvt_pk_bf16_f32 v15, v13, v13
        v_add_f32 v11, v11, v13
        """)
        for r in range(4): a(f"v_and_b32 v{D0+r}, v14, v{5+r}")
        for r in range(4): a(f"v_and_b32 v{D1+r}, v15, v{5+r}")
        a(f"s_waitcnt vmcnt({W})")
        for u in range(2):
            for t in range(3):
                d = D0 if u == 0 else D1
                vr = v0 + 12 * u + 4 * t
                a(f"v_mfma_f32_16x16x32_bf16 v[{ACC+4*t}:{ACC+4*t+3}], v[{d}:{d+3}], v[{vr}:{vr+3}], v[{ACC+4*t}:{ACC+4*t+3}]")
        a(f"s_cmp_eq_u32 {sEND}, {R}\ns_cbranch_scc1 L_sdone")
        vloads(s)
    a("s_branch L_loop")
    for s in range(R):
        a(f"L_rbw{s}:")
        spin_check()
        a(f"""
        ds_read_b32 v16, v17
        s_waitcnt lgkmcnt(0)
        v_readfirstlane_b32 {sV_}, v16
        s_cmp_eq_u32 {sV_}, -1
        s_cbranch_scc1 L_rbw{s}
        s_branch L_rbok{s}
        """)
    a(f"""
    L_rare:
    v_max_f32_dpp v15, v15, v15 row_ror:8 row_mask:0xf bank_mask:0xf
    v_max_f32_dpp v15, v15, v15 row_bcast:15 row_mask:0xa bank_mask:0xf
    v_max_f32_dpp v15, v15, v15 row_bcast:31 row_mask:0xc bank_mask:0xf
    v_readlane_b32 s57, v15, 63
    v_mov_b32 v9, s57
    v_mul_f32 v15, 0x{0x80000000 | LOG2E:08x}, v9
    v_sub_f32 v14, v15, v10
    v_exp_f32 v14, v14
    v_mov_b32 v10, v15
    v_mul_f32 v11, v11, v14
    """)
    for i in range(12): a(f"v_mul_f32 v{ACC+i}, v{ACC+i}, v14")
    a("s_setpc_b64 s[66:67]")
    a("L_sdone:")
    stamp(3, STAMPV_S)
    a(f"""
    v_add_f32_dpp v11, v11, v11 row_ror:8 row_mask:0xf bank_mask:0xf
    v_and_b32 v12, 7, v0
    v_lshlrev_b32 v12, 5, v12
    v_add_f32_dpp v11, v11, v11 row_bcast:15 row_mask:0xa bank_mask:0xf
    v_bfe_u32 v13, v0, 4, 1
    v_lshl_add_u32 v12, v13, 4, v12
    v_add_f32_dpp v11, v11, v11 row_bcast:31 row_mask:0xc bank_mask:0xf
    v_lshrrev_b32 v13, 5, v0
    v_mul_u32_u24 v13, 768, v13
    s_mul_i32 s57, {sW}, 1536
    v_add3_u32 v12, v12, v13, s57
    s_lshl_b32 s57, {sW}, 3
    v_mov_b32 v13, s57
    s_mov_b32 exec_lo, 0x00ff00ff
    s_mov_b32 exec_hi, 0xff00ff00
    ds_write_b128 v12, v[{ACC}:{ACC+3}] offset:{L_PART}
    ds_write_b128 v12, v[{ACC+4}:{ACC+7}] offset:{L_PART+256}
    ds_write_b128 v12, v[{ACC+8}:{ACC+11}] offset:{L_PART+512}
    s_mov_b32 exec_lo, 0
    s_mov_b32 exec_hi, 0x80000000
    ds_write_b64 v13, v[10:11] offset:{L_ML}
    s_waitcnt lgkmcnt(0)
    s_barrier
    """)
    stamp_dump(STAMPV_S)
    a(f"""
    s_endpgm
    L_fail:
    s_mov_b64 exec, 1
    s_lshl_b32 s52, s2, 3
    s_add_u32 s52, s52, s3
    s_or_b32 s52, s52, 0xdead0000
    v_mov_b32 v1, 0
    v_mov_b32 v2, s52
    global_store_dword v1, v2, s[{sDBG}:{sDBG+1}]
    L_exit:
    s_endpgm
    """)

    body = pad(a.L)
    hdr = open(os.path.join(os.path.dirname(os.path.abspath(__file__)), "..", "cdna_kernels", NAME + ".s.ref")).read().split("\n")
    hdr = [l for l in hdr if l.startswith(";") and "@launch" not in l and "Override launch" not in l and "grid=ceil" not in l]
    out = hdr + [f"; @launch grid=(256,1,1) block=(512,1,1) lds={LDS_BYTES}",
                 '.amdgcn_target "amdgcn-amd-amdhsa--gfx950"', ".text", f".globl {NAME}_kernel", ".p2align 8",
                 f".type {NAME}_kernel,@function", f"{NAME}_kernel:"] + body + [
        '.section .rodata,"a"', ".p2align 6", f".amdhsa_kernel {NAME}_kernel",
        "  .amdhsa_next_free_vgpr 256", "  .amdhsa_next_free_sgpr 102", "  .amdhsa_accum_offset 256",
        "  .amdhsa_group_segment_fixed_size 0", "  .amdhsa_kernarg_size 112", "  .amdhsa_user_sgpr_count 2",
        "  .amdhsa_user_sgpr_kernarg_segment_ptr 1", "  .amdhsa_system_sgpr_workgroup_id_x 1",
        "  .amdhsa_float_denorm_mode_32 3", ".end_amdhsa_kernel"]
    return "\n".join(out) + "\n"


if __name__ == "__main__":
    outp = sys.argv[1]
    kw = eval("dict(" + (sys.argv[2] if len(sys.argv) > 2 else "") + ")")
    open(outp, "w").write(gen(**kw))
```

```python
import sys, os
sys.path.insert(0, os.path.dirname(os.path.abspath(__file__)))
from asmlib import Asm, pad

NAME = "adaLN_cond__mha_block_cached__glu_gated_geglu__decode"

WS_EPOCH = 0
WS_CLR = 256
WS_CNT = 4096
WS_MOD = 0x4000
WS_QP = 0x20000
WS_PO = 0x80000
WS_PML = 0xC0000
WS_MB = WS_MOD + 5120
WS_GU = 0xC4000
WS_AP = 0xC5800
WS_USED = 0x100000
WS_STAMP = 0x100000
L_PROG = 0
L_SB = 16
L_FREE = 32
L_RB = 64
L_QV = 1152
L_HV = 1536
L_XV = 2048
L_PART = 5120
L_ML = 11264
L_STAT = 11328
L_WQ = 12288
L_STG = 43008
LDS_BYTES = 43008 + 98304

END = 0x7FFFFFFF
OOB = 0x4000000
LOG2E = 0x3FB8AA3B
SCALE = 0x3D93CD3A
HEADBYTES = 32768 * 384

sX, sK, sV, sWQ, sWO, sGATE, sUP, sDOWN, sC, sWM, sOUT, sDBG, sWS = 4, 6, 8, 10, 12, 16, 18, 20, 22, 24, 26, 28, 30
WSR = "s[32:35]"; AR = "s[36:39]"; BR = "s[40:43]"; CR = "s[44:47]"
sH, sS, sTAG, sE = "s48", "s49", "s50", "s51"
sSPIN = "s68"


def gen(NSTAT=54, D=2, NL=2, prof=False, SH=3, LA=0, dbgt=False, PACE=54, PM=6, SM=12, PQ=4, SQ=16, GPH=5, T2G=4, GATE3=2, RAP=2, DRY=True, SKIPZ=True):
    a = Asm()
    PR = 512 - 8 * NSTAT
    R = 4
    NPRE = R + NL
    assert NSTAT <= 64 and NSTAT >= NPRE + D and NSTAT + PR + 1 <= 256
    STAMPV_S, STAMPV_H = 19, 63

    def stamp(i, v):
        if prof:
            a(f"""
            s_memrealtime s[98:99]
            s_waitcnt lgkmcnt(0)
            v_writelane_b32 v{v}, s98, {i}
            """)

    def stamp_dump(v):
        if prof:
            a(f"""
            s_mov_b64 exec, -1
            s_lshl_b32 s98, s2, 3
            s_add_u32 s98, s98, s3
            s_lshl_b32 s98, s98, 8
            s_add_u32 s98, s98, {WS_STAMP}
            v_lshlrev_b32 v1, 2, v0
            v_add_u32 v1, s98, v1
            global_store_dword v1, v{v}, s[{sWS}:{sWS+1}]
            s_waitcnt vmcnt(0)
            """)

    def dbgstamp(slot, inv=False):
        if dbgt:
            a(f"""
            s_memrealtime s[98:99]
            s_mov_b64 s[96:97], exec
            s_waitcnt lgkmcnt(0)
            {"s_not_b32 s98, s98" if inv else ""}
            s_mov_b64 exec, 1
            v_mov_b32 v254, s98
            v_mov_b32 v255, {4*slot}
            global_atomic_umax v255, v254, s[{sDBG}:{sDBG+1}] sc1
            s_mov_b64 exec, s[96:97]
            """)

    def spin_check():
        a(f"s_sub_u32 {sSPIN}, {sSPIN}, 1\ns_cbranch_scc1 L_fail")

    def srd(r, base, size):
        a(f"""
        s_mov_b32 s{r}, s{base}
        s_mov_b32 s{r+1}, s{base+1}
        s_mov_b32 s{r+2}, {size}
        s_mov_b32 s{r+3}, 0x20000
        """)

    def bf16_round1(v, t=None):
        a(f"v_cvt_pk_bf16_f32 v{v}, v{v}, v{v}\nv_and_b32 v{v}, 0xffff0000, v{v}")

    def bf16_round2(v0, v1):
        a(f"""
        v_cvt_pk_bf16_f32 v{v1}, v{v0}, v{v1}
        v_lshlrev_b32 v{v0}, 16, v{v1}
        v_and_b32 v{v1}, 0xffff0000, v{v1}
        """)

    def unpack2(src, lo, hi):
        assert lo != src
        a(f"v_lshlrev_b32 v{lo}, 16, v{src}\nv_and_b32 v{hi}, 0xffff0000, v{src}")

    def reduce64(vs):
        for m in ("row_ror:8 row_mask:0xf", "row_ror:4 row_mask:0xf", "row_ror:2 row_mask:0xf", "row_ror:1 row_mask:0xf",
                  "row_bcast:15 row_mask:0xa", "row_bcast:31 row_mask:0xc"):
            for v in vs:
                a(f"v_add_f32_dpp v{v}, v{v}, v{v} {m} bank_mask:0xf")

    def silu(x, t):
        a(f"""
        v_mul_f32 v{t}, 0x{0x80000000 | LOG2E:08x}, v{x}
        v_exp_f32 v{t}, v{t}
        v_add_f32 v{t}, 1.0, v{t}
        v_rcp_f32 v{t+1}, v{t}
        v_mul_f32 v{t+2}, v{x}, v{t+1}
        v_fma_f32 v{t}, -v{t+2}, v{t}, v{x}
        v_fma_f32 v{x}, v{t}, v{t+1}, v{t+2}
        v_cmp_class_f32 vcc, v{x}, 3
        v_cndmask_b32 v{x}, v{x}, v{t+2}, vcc
        """)

    def div_rn(q, n, d, r, t):
        a(f"""
        v_mul_f32 v{q}, v{n}, v{r}
        v_fma_f32 v{t}, -v{q}, v{d}, v{n}
        v_fmac_f32 v{q}, v{t}, v{r}
        """)

    def soft_barrier(idx):
        lab = a.lab("L_sb")
        a(f"""
        v_mov_b32 v1, {L_SB + 4*idx}
        v_mov_b32 v2, 1
        s_mov_b64 exec, 1
        ds_add_u32 v1, v2
        s_mov_b64 exec, -1
        {lab}:
        """)
        spin_check()
        a(f"""
        ds_read_b32 v2, v1
        s_waitcnt lgkmcnt(0)
        v_readfirstlane_b32 s52, v2
        s_cmp_lt_u32 s52, 4
        s_cbranch_scc1 {lab}
        """)

    def gemv(nkb, D, xaddr, wbase=64, tmp=32, ntmp=7):
        for i in range(min(ntmp, nkb)):
            a(f"ds_read_b128 v[{tmp+4*i}:{tmp+4*i+3}], v{xaddr} offset:{64*i}")
        for kb in range(nkb):
            outstanding = min(ntmp, nkb - kb) - 1
            t = tmp + 4 * (kb % ntmp)
            a(f"s_waitcnt lgkmcnt({outstanding})")
            c = "0" if kb == 0 else f"v[{D}:{D+3}]"
            a(f"v_mfma_f32_16x16x32_bf16 v[{D}:{D+3}], v[{wbase+4*kb}:{wbase+4*kb+3}], v[{t}:{t+3}], {c}")
            if kb + ntmp < nkb:
                a(f"ds_read_b128 v[{t}:{t+3}], v{xaddr} offset:{64*(kb+ntmp)}")

    a(f"""
    s_cmp_ge_u32 s2, 256
    s_cbranch_scc1 L_exit
    s_load_dwordx16 s[4:19], s[0:1], 0
    s_load_dwordx8 s[20:27], s[0:1], 64
    s_load_dwordx4 s[28:31], s[0:1], 96
    v_lshrrev_b32 v1, 6, v0
    v_and_b32 v0, 63, v0
    s_lshr_b32 {sH}, s2, 3
    v_readfirstlane_b32 s3, v1
    s_and_b32 {sS}, s2, 7
    s_mov_b32 {sSPIN}, 0x40000
    s_cmp_ge_u32 {sS}, 6
    s_cselect_b32 s62, 1, 0
    s_cmp_lt_u32 {sH}, 10
    s_cselect_b32 s62, s62, 0
    s_cmp_ge_u32 s3, 4
    s_cbranch_scc1 L_stream
    """)
    sISM = "s62"

    def ppoll(tag, P, nld, stagger, issue, check, take):
        for b in range(P):
            issue(b)
            if b < P - 1: a(f"s_sleep {stagger}")
        a(f"L_pp{tag}:")
        for b in range(P):
            a(f"s_waitcnt vmcnt({nld*(P-1)})")
            check(b)
            a(f"s_cbranch_vccz L_pp{tag}_{b}")
            if b == 0: spin_check()
            issue(b)
        a(f"s_branch L_pp{tag}")
        for b in range(P):
            a(f"L_pp{tag}_{b}:")
            take(b)
            if b < P - 1: a(f"s_branch L_pp{tag}_x")
        a(f"L_pp{tag}_x:")

    def tag_calc():
        a(f"s_mul_i32 {sTAG}, {sE}, 0x9E3779B1\ns_add_u32 {sTAG}, {sTAG}, 0x7F4A7C15")

    def silu_slice():
        unpack2(12, 14, 15); unpack2(13, 16, 17)
        for i in range(4): silu(14 + i, 18)
        a(f"""
        v_cvt_pk_bf16_f32 v12, v14, v15
        v_cvt_pk_bf16_f32 v13, v16, v17
        s_mov_b32 exec_hi, 0xff
        ds_write_b64 v10, v[12:13] offset:{L_XV}
        s_mov_b64 exec, -1
        """)

    def stage_tr(wbase, nkb, va0, va1):
        for kb in range(nkb):
            for u in range(2):
                r = wbase + 4 * kb + 2 * u
                va, off = (va0, kb * 4096 + u * 512) if kb < 16 else (va1, (kb - 16) * 4096 + u * 512)
                a(f"ds_read_b64_tr_b16 v[{r}:{r+1}], v{va} offset:{off}")
            if kb % 4 == 3: a("s_waitcnt lgkmcnt(6)" if kb < nkb - 1 else "s_waitcnt lgkmcnt(0)")

    def mod_publish(soff):
        a(f"""
        v_lshlrev_b32 v10, 4, v5
        v_mov_b32 v22, {sTAG}
        v_mov_b32 v23, {sTAG}
        v_cvt_pk_bf16_f32 v20, v16, v17
        v_cvt_pk_bf16_f32 v21, v18, v19
        s_mov_b32 exec_lo, 0x00010001
        s_mov_b32 exec_hi, 0x00010001
        buffer_store_dwordx4 v[20:23], v10, {WSR}, {soff} offen sc1
        s_mov_b64 exec, -1
        """)

    a("s_setprio 3")
    if prof: a(f"v_mov_b32 v{STAMPV_H}, 0")
    stamp(0, STAMPV_H)
    a(f"""
    v_lshrrev_b32 v3, 3, v0
    v_and_b32 v4, 7, v0
    v_lshrrev_b32 v5, 4, v0
    v_and_b32 v6, 15, v0
    v_lshrrev_b32 v7, 2, v6
    v_lshl_add_u32 v7, v5, 3, v7
    v_lshlrev_b32 v7, 7, v7
    v_and_b32 v8, 3, v6
    v_lshl_add_u32 v7, v8, 3, v7
    v_lshlrev_b32 v11, 2, v0
    v_mov_b32 v12, -1
    v_mov_b32 v13, -1
    v_mov_b32 v14, -1
    v_mov_b32 v15, -1
    s_cmp_eq_u32 s3, 2
    s_cbranch_scc1 L_init2
    s_cmp_eq_u32 s3, 1
    s_cbranch_scc0 L_init3
    s_mul_i32 s52, {sH}, {GPH}
    s_add_u32 s52, s52, {sS}
    s_lshl_b32 s52, s52, 2
    v_lshlrev_b32 v10, 5, v0
    v_add_u32 v10, s52, v10
    v_and_b32 v10, 2047, v10
    v_cmp_gt_u32 vcc, {NSTAT}, v0
    v_cndmask_b32 v10, v12, v10, vcc
    ds_write_b32 v11, v10 offset:{L_RB}
    ds_write_b32 v11, v12 offset:{L_RB+256}
    ds_write_b32 v11, v12 offset:{L_RB+512}
    ds_write_b32 v11, v12 offset:{L_RB+768}
    s_branch L_init_done
    L_init2:
    v_lshlrev_b32 v10, 4, v0
    v_min_u32 v10, {L_XV - L_QV - 16}, v10
    ds_write_b128 v10, v[12:15] offset:{L_QV}
    s_branch L_init_done
    L_init3:
    v_lshlrev_b32 v10, 2, v6
    v_mov_b32 v12, 0
    ds_write_b32 v10, v12 offset:0
    L_init_done:
    s_sub_u32 s53, s3, 1                  ; t (waves 1..3)
    s_mul_i32 s54, {sS}, {80*12288}
    s_mul_i32 s55, {sH}, 384
    s_add_u32 s54, s54, s55
    s_lshl_b32 s55, s53, 7
    s_add_u32 s54, s54, s55
    s_mul_i32 s55, s53, 10240
    s_add_u32 s55, s55, {L_WQ}
    s_lshl_b32 s63, {sH}, 1
    s_add_u32 s63, s63, {sS}
    s_sub_u32 s63, s63, 6
    s_waitcnt lgkmcnt(0)
    s_load_dword {sE}, s[{sWS}:{sWS+1}], {WS_EPOCH}
    s_cmp_eq_u32 {sISM}, 0
    s_cbranch_scc1 L_nom0
    """)
    srd(36, sWM, 640 * 7680)
    srd(44, sC, 1280)
    a(f"""
    v_mul_u32_u24 v9, 7680, v3
    v_lshl_add_u32 v9, v4, 4, v9
    s_mul_i32 s52, s3, 320
    v_lshlrev_b32 v10, 3, v0
    buffer_load_dwordx2 v[12:13], v10, {CR}, s52 offen
    v_add_u32 v10, s52, v10
    s_mul_i32 s56, s3, {8*7680}
    s_lshl_b32 s57, s63, 7
    s_add_u32 s56, s56, s57
    s_lshl_b32 s57, s3, 10
    s_add_u32 m0, s57, {L_STG}
    s_mov_b32 s57, 20
    L_mdma:
    buffer_load_dwordx4 v9, {AR}, s56 offen nt lds
    s_add_u32 m0, m0, 4096
    s_add_u32 s56, s56, {32*7680}
    s_sub_u32 s57, s57, 1
    s_cmp_lg_u32 s57, 0
    s_cbranch_scc1 L_mdma
    L_nom0:
    """)
    srd(32, sWS, WS_USED)
    a(f"""
    s_cmp_eq_u32 s3, 0
    s_cbranch_scc1 L_h0_issue
    v_mul_u32_u24 v9, 12288, v3
    v_lshl_add_u32 v9, v4, 4, v9
    """)
    srd(36, sWQ, 640 * 12288)
    a("s_mov_b32 m0, s55")
    for m in range(10):
        a(f"buffer_load_dwordx4 v9, {AR}, s54 offen nt lds")
        if m < 9:
            a(f"s_add_u32 m0, m0, 1024\ns_add_u32 s54, s54, {8*12288}")
    a(f"""
    s_or_b32 s52, s53, {sS}
    s_cmp_lg_u32 s52, 0
    s_cbranch_scc1 L_issued
    s_lshl_b32 s52, {sH}, 8
    s_add_u32 s52, s52, {WS_CNT}
    v_mov_b32 v9, 0
    s_mov_b64 exec, 1
    buffer_store_dword v9, v9, {WSR}, s52 offen sc1
    s_mov_b64 exec, -1
    s_branch L_issued
    L_h0_issue:
    """)
    srd(40, sX, 1280)
    for i in range(5):
        a(f"buffer_load_dword v{24+i}, v11, {BR}, 0 offen offset:{256*i}")
    a(f"""
    v_lshlrev_b32 v9, 3, v0
    s_mul_i32 s57, {sS}, 160
    buffer_load_dwordx2 v[30:31], v9, {BR}, s57 offen
    L_issued:
    s_barrier
    """)
    stamp(1, STAMPV_H)
    a(f"""
    s_cmp_eq_u32 {sISM}, 0
    s_cbranch_scc1 L_nom1
    s_waitcnt vmcnt(26)
    """)
    silu_slice()
    a(f"""
    s_lshl_b32 s52, s3, 5
    v_add_u32 v10, s52, v7
    v_add_u32 v10, {L_STG}, v10
    v_add_u32 v11, 0x10000, v10
    v_lshlrev_b32 v12, 4, v5
    v_add_u32 v12, {L_XV}, v12
    s_lshl_b32 s56, s63, 8
    s_lshl_b32 s57, s3, 6
    s_add_u32 s56, s56, s57
    s_add_u32 s56, s56, {WS_MOD}
    s_cmp_eq_u32 s3, 0
    s_cbranch_scc1 L_mw0
    s_waitcnt vmcnt(10)
    L_mw0:
    s_waitcnt vmcnt(10)
    s_cbranch_scc0 L_mw1
    s_waitcnt vmcnt(6)
    L_mw1:
    s_waitcnt lgkmcnt(0)
    """)
    tag_calc()
    soft_barrier(3)
    stamp(2, STAMPV_H)
    stage_tr(64, 20, 10, 11)
    gemv(20, 16, 12)
    mod_publish("s56")
    a(f"""
    v_lshlrev_b32 v11, 2, v0
    L_nom1:
    s_cmp_eq_u32 s3, 0
    s_cbranch_scc1 L_h0
    """)
    a(f"""
    v_add_u32 v10, s55, v7
    v_lshlrev_b32 v11, 9, v5
    v_lshrrev_b32 v12, 2, v6
    v_lshl_add_u32 v11, v12, 7, v11
    v_lshl_add_u32 v11, v8, 3, v11
    v_add_u32 v11, s55, v11
    v_lshlrev_b32 v12, 4, v5
    v_lshlrev_b32 v13, 3, v5
    v_and_b32 v14, 1, v6
    v_cmp_eq_u32 s[64:65], 1, v14
    v_lshl_add_u32 v14, v5, 1, v6
    v_lshlrev_b32 v14, 4, v14
    v_lshrrev_b32 v15, 5, v0
    v_mul_u32_u24 v15, 1536, v15
    v_and_b32 v16, 31, v0
    v_lshl_add_u32 v15, v16, 4, v15
    s_waitcnt vmcnt(0) lgkmcnt(0)
    """)
    tag_calc()
    for cb in range(4):
        for kb in range(2):
            for u in range(2):
                r = 64 + (cb * 2 + kb) * 4 + 2 * u
                a(f"ds_read_b64_tr_b16 v[{r}:{r+1}], v10 offset:{kb*4096 + u*512 + cb*32}")
        a(f"ds_read_b64_tr_b16 v[{96+2*cb}:{97+2*cb}], v11 offset:{8192 + cb*32}")
        if cb % 2 == 1: a("s_waitcnt lgkmcnt(0)")
    a(f"""
    s_mul_i32 s54, s2, 1536
    s_lshl_b32 s55, s53, 9
    s_add_u32 s56, s55, {WS_QP}
    s_add_u32 s54, s54, s56
    s_mul_i32 s55, {sH}, {8*1536}
    s_add_u32 s55, s55, s56
    s_add_u32 s56, s55, 3072
    s_add_u32 s57, s55, 6144
    s_add_u32 s58, s55, 9216
    """)
    for q in range(4):
        a(f"v_mov_b32 v{122+4*q}, {sTAG}\nv_mov_b32 v{123+4*q}, {sTAG}")
    a("L_hwait:")
    spin_check()
    a(f"""
    ds_read_b128 v[16:19], v12 offset:{L_HV}
    ds_read_b128 v[20:23], v12 offset:{L_HV+64}
    ds_read_b64 v[24:25], v13 offset:{L_HV+128}
    s_waitcnt lgkmcnt(0)
    v_max3_u32 v26, v16, v17, v18
    v_max3_u32 v27, v19, v20, v21
    v_max3_u32 v28, v22, v23, v24
    v_max3_u32 v26, v26, v27, v25
    v_max_u32 v26, v26, v28
    v_cmp_eq_u32 vcc, -1, v26
    s_cbranch_vccnz L_hwait
    """)
    stamp(3, STAMPV_H)
    for kb in range(2):
        for cb in range(4):
            w = 64 + (cb * 2 + kb) * 4
            c = "0" if kb == 0 else f"v[{104+4*cb}:{107+4*cb}]"
            a(f"v_mfma_f32_16x16x32_bf16 v[{104+4*cb}:{107+4*cb}], v[{w}:{w+3}], v[{16+4*kb}:{19+4*kb}], {c}")
    for cb in range(4):
        a(f"v_mfma_f32_16x16x16_bf16 v[{104+4*cb}:{107+4*cb}], v[{96+2*cb}:{97+2*cb}], v[24:25], v[{104+4*cb}:{107+4*cb}]")
    for cb in range(4):
        d = 104 + 4 * cb; o = 120 + 4 * cb
        a(f"v_cndmask_b32 v{o}, v{d}, v{d+2}, s[64:65]\nv_cndmask_b32 v{o+1}, v{d+1}, v{d+3}, s[64:65]")
    a("s_mov_b32 exec_lo, 0x00030003\ns_mov_b32 exec_hi, 0x00030003")
    for cb in range(4):
        a(f"buffer_store_dwordx4 v[{120+4*cb}:{123+4*cb}], v14, {WSR}, s54 offen offset:{128*cb} sc1")
    a("s_mov_b64 exec, -1")
    stamp(4, STAMPV_H)
    QB = 136

    def q_issue(b):
        for i in range(4):
            r = QB + 16 * b + 4 * i
            a(f"buffer_load_dwordx4 v[{r}:{r+3}], v15, {WSR}, s{55+i} offen sc1")

    def q_check(b):
        r = QB + 16 * b
        a(f"""
        v_xor_b32 v26, {sTAG}, v{r+2}
        v_bitop3_b32 v26, v26, v{r+6}, {sTAG} bitop3:0xf6
        v_bitop3_b32 v26, v26, v{r+10}, {sTAG} bitop3:0xf6
        v_bitop3_b32 v26, v26, v{r+14}, {sTAG} bitop3:0xf6
        v_cmp_ne_u32 vcc, 0, v26
        """)

    def q_take(b):
        r = QB + 16 * b
        a(f"""
        v_add_f32 v16, v{r}, v{r+4}
        v_add_f32 v17, v{r+1}, v{r+5}
        v_add_f32 v18, v{r+8}, v{r+12}
        v_add_f32 v19, v{r+9}, v{r+13}
        """)
    ppoll("q", PQ, 4, SQ, q_issue, q_check, q_take)
    a(f"""
    v_add_f32 v16, v16, v18
    v_add_f32 v17, v17, v19
    s_lshl_b32 s52, s53, 7
    v_lshl_add_u32 v10, v0, 2, s52
    v_permlane32_swap_b32 v16, v18
    v_permlane32_swap_b32 v17, v19
    v_add_f32 v16, v16, v18
    v_add_f32 v17, v17, v19
    v_cvt_pk_bf16_f32 v16, v16, v17
    v_min_u32 v16, -2, v16
    s_mov_b32 exec_hi, 0
    ds_write_b32 v10, v16 offset:{L_QV}
    s_mov_b64 exec, -1
    """)
    stamp(5, STAMPV_H)
    a("s_branch L_mid")

    a(f"""
    L_h0:
    v_and_b32 v15, 31, v0
    v_min_u32 v15, 19, v15
    v_lshlrev_b32 v15, 4, v15
    v_lshrrev_b32 v16, 5, v0
    v_mul_u32_u24 v16, 2560, v16
    v_add_u32 v15, v15, v16
    s_mul_i32 s56, {sS}, 320
    s_add_u32 s56, s56, {WS_MOD}
    s_waitcnt vmcnt(1) lgkmcnt(0)
    s_cmp_lg_u32 {sISM}, 0
    s_cbranch_scc1 L_h0x
    s_waitcnt vmcnt(0)
    L_h0x:
    """)
    tag_calc()
    for i in range(5):
        unpack2(24 + i, 32 + 2 * i, 33 + 2 * i)
    a("v_readfirstlane_b32 s58, v32")
    for i in range(10):
        a(f"v_subrev_f32 v{32+i}, s58, v{32+i}")
    a("v_add_f32 v42, v32, v33\nv_mul_f32 v43, v32, v32\nv_fmac_f32 v43, v33, v33")
    for i in range(2, 10):
        a(f"v_add_f32 v42, v42, v{32+i}\nv_fmac_f32 v43, v{32+i}, v{32+i}")
    reduce64([42, 43])
    a(f"""
    v_readlane_b32 s59, v42, 63
    v_readlane_b32 s60, v43, 63
    v_mov_b32 v44, 0x3acccccd             ; 1/640
    v_mul_f32 v42, s59, v44               ; S1/n
    v_mul_f32 v43, s60, v44               ; S2/n
    v_fma_f32 v43, -v42, v42, v43         ; var
    v_add_f32 v42, s58, v42               ; mean
    """)
    bf16_round2(42, 43)
    a("v_add_f32 v43, 0x3727c5ac, v43")
    bf16_round1(43)
    a("v_sqrt_f32 v43, v43")
    bf16_round1(43)
    a("v_rcp_f32 v44, v43")
    unpack2(30, 32, 33); unpack2(31, 34, 35)
    for k in range(4): a(f"v_sub_f32 v{32+k}, v{32+k}, v42")
    bf16_round2(32, 33); bf16_round2(34, 35)
    for k in range(4): div_rn(36 + k, 32 + k, 43, 44, 45)
    bf16_round2(36, 37); bf16_round2(38, 39)
    a("v_lshlrev_b32 v11, 3, v0")
    stamp(3, STAMPV_H)
    ppoll("m", PM, 1, SM,
          lambda b: a(f"buffer_load_dwordx4 v[{64+4*b}:{67+4*b}], v15, {WSR}, s56 offen sc1"),
          lambda b: a(f"v_cmp_ne_u32 vcc, {sTAG}, v{66+4*b}"),
          lambda b: a(f"v_mov_b32 v16, v{64+4*b}\nv_mov_b32 v17, v{65+4*b}"))
    stamp(4, STAMPV_H)
    a("v_permlane32_swap_b32 v16, v18\nv_permlane32_swap_b32 v17, v19")
    unpack2(18, 20, 21); unpack2(19, 22, 23)
    for k in range(4): a(f"v_add_f32 v{20+k}, 1.0, v{20+k}")
    unpack2(16, 24, 25); unpack2(17, 26, 27)
    bf16_round2(20, 21); bf16_round2(22, 23)
    for k in range(4): a(f"v_mul_f32 v{20+k}, v{36+k}, v{20+k}")
    bf16_round2(20, 21); bf16_round2(22, 23)
    for k in range(4): a(f"v_add_f32 v{20+k}, v{20+k}, v{24+k}")
    a(f"""
    v_cvt_pk_bf16_f32 v20, v20, v21
    v_cvt_pk_bf16_f32 v21, v22, v23
    v_min_u32 v20, -2, v20
    v_min_u32 v21, -2, v21
    s_mov_b32 exec_lo, 0xfffff
    s_mov_b32 exec_hi, 0
    ds_write_b64 v11, v[20:21] offset:{L_HV}
    s_mov_b64 exec, -1
    """)
    stamp(5, STAMPV_H)

    sROLE, sG, sK5, sID, sSTR, sSOF, sNB = "s69", "s70", "s71", "s72", "s73", "s74", "s75"
    a(f"""
    L_mid:
    s_setprio 0
    s_waitcnt vmcnt(0)
    s_mov_b32 {sROLE}, 0
    s_mov_b32 s39, 0x20000
    s_cmp_ge_u32 {sS}, 6
    s_cbranch_scc1 L_rclr
    s_cmp_ge_u32 {sS}, 3
    s_cbranch_scc1 L_rs345
    s_lshl_b32 s53, {sS}, 1
    s_sub_u32 s52, {sH}, s53
    s_and_b32 s52, s52, 31
    s_cmp_eq_u32 {sS}, 2
    s_cselect_b32 s54, 20, 30
    s_sub_u32 {sID}, s52, s54
    s_add_u32 {sID}, {sID}, s53
    s_cmp_ge_u32 s52, s54
    s_cbranch_scc1 L_r5
    s_mul_i32 {sG}, s52, 205
    s_lshr_b32 {sG}, {sG}, 11
    s_mul_i32 s54, {sG}, 10
    s_sub_u32 {sK5}, s52, s54
    s_mul_i32 s54, {sS}, 3
    s_add_u32 {sG}, {sG}, s54
    s_branch L_r2
    L_rs345:
    s_cmp_eq_u32 {sS}, 5
    s_cbranch_scc1 L_rs5
    s_sub_u32 s53, {sS}, 3
    s_mul_i32 {sID}, s53, 24
    s_add_u32 {sID}, {sID}, {sH}
    s_cmp_lt_u32 {sH}, 24
    s_cbranch_scc1 L_r3
    s_lshl_b32 s53, s53, 3
    s_add_u32 {sID}, {sH}, s53
    s_sub_u32 {sID}, {sID}, 8
    s_branch L_r5
    L_rs5:
    s_sub_u32 {sID}, {sH}, 10
    s_cmp_lt_u32 {sID}, 10
    s_cbranch_scc1 L_r4
    s_add_u32 {sID}, {sH}, 12
    s_cmp_lt_u32 {sH}, 20
    s_cbranch_scc1 L_mid_done
    s_cmp_lt_u32 {sH}, 28
    s_cbranch_scc1 L_r5
    s_branch L_mid_done
    L_rclr:
    s_lshl_b32 s52, {sS}, 5
    s_add_u32 s52, s52, {sH}
    """)
    a(f"""
    s_cmp_lg_u32 s3, 1
    s_cbranch_scc1 L_mid_done
    v_mov_b32 v12, -1
    v_mov_b32 v13, -1
    v_mov_b32 v14, -1
    v_mov_b32 v15, -1
    v_lshlrev_b32 v10, 4, v0
    s_sub_u32 s53, s52, 192
    s_lshl_b32 s52, s53, 10
    s_add_u32 s52, s52, {WS_GU}
    s_branch L_clr1
    L_clr:
    buffer_store_dwordx4 v[12:15], v10, {WSR}, s52 offen sc1
    s_add_u32 s52, s52, 65536
    L_clr1:
    s_cmp_lt_u32 s52, {WS_AP + RAP*20480}
    s_cbranch_scc1 L_clr
    v_mov_b32 v11, {sTAG}
    v_mov_b32 v10, 0
    s_lshl_b32 s52, s53, 2
    s_add_u32 s52, s52, {WS_CLR}
    s_waitcnt vmcnt(0)
    s_mov_b64 exec, 1
    buffer_store_dword v11, v10, {WSR}, s52 offen sc1
    s_mov_b64 exec, -1
    s_branch L_mid_done
    L_r2:
    s_mov_b32 {sROLE}, 2
    s_mov_b32 s36, s{sWO}
    s_mov_b32 s37, s{sWO+1}
    s_mov_b32 s38, {6144*1280}
    s_mov_b32 {sSTR}, 1280
    s_mul_i32 {sSOF}, {sG}, {768*1280}
    s_lshl_b32 s52, {sK5}, 7
    s_add_u32 {sSOF}, {sSOF}, s52
    s_mov_b32 {sNB}, 24
    s_branch L_stage
    L_r3:
    s_mov_b32 {sROLE}, 3
    s_cmp_ge_u32 {sID}, 24
    s_cselect_b32 s36, s{sUP}, s{sGATE}
    s_cselect_b32 s37, s{sUP+1}, s{sGATE+1}
    s_cselect_b32 s52, 24, 0
    s_mov_b32 s38, {640*3072}
    s_mov_b32 {sSTR}, 3072
    s_sub_u32 s52, {sID}, s52
    s_lshl_b32 {sSOF}, s52, 7
    s_mov_b32 {sNB}, 20
    s_branch L_stage
    L_r4:
    s_mov_b32 {sROLE}, 4
    s_mov_b32 s36, s{sDOWN}
    s_mov_b32 s37, s{sDOWN+1}
    s_mov_b32 s38, {1536*1280}
    s_mov_b32 {sSTR}, 1280
    s_lshl_b32 {sSOF}, {sID}, 7
    s_mov_b32 {sNB}, 24
    s_branch L_stage
    L_r5:
    s_mov_b32 {sROLE}, 5
    s_mov_b32 s36, s{sWM}
    s_mov_b32 s37, s{sWM+1}
    s_mov_b32 s38, {640*7680}
    s_mov_b32 {sSTR}, 7680
    s_lshl_b32 {sSOF}, {sID}, 7
    s_add_u32 {sSOF}, {sSOF}, 2560
    s_mov_b32 {sNB}, 20
    """)
    srd(44, sC, 1280)
    a(f"""
    s_mul_i32 s52, s3, 320
    v_lshlrev_b32 v10, 3, v0
    buffer_load_dwordx2 v[12:13], v10, {CR}, s52 offen
    v_add_u32 v10, s52, v10
    s_waitcnt vmcnt(0)
    """)
    silu_slice()
    a(f"""
    L_stage:
    v_mul_lo_u32 v9, {sSTR}, v3
    v_lshl_add_u32 v9, v4, 4, v9
    s_lshl_b32 s53, {sSTR}, 3
    s_mul_i32 s52, s53, s3
    s_add_u32 {sSOF}, {sSOF}, s52
    s_lshl_b32 s53, {sSTR}, 5
    s_lshl_b32 s54, s3, 5
    v_add_u32 v10, s54, v7
    v_add_u32 v10, {L_STG}, v10
    v_add_u32 v11, 0x10000, v10
    """)
    if NL:
        a(f"v_mov_b32 v1, {L_FREE}\nL_freew:")
        spin_check()
        a("""
        s_sleep 4
        ds_read_b128 v[16:19], v1
        s_waitcnt lgkmcnt(0)
        v_and_b32 v16, v16, v17
        v_and_b32 v18, v18, v19
        v_and_b32 v16, v16, v18
        v_cmp_eq_u32 vcc, 0, v16
        s_cbranch_vccnz L_freew
        """)

    def stage_dma():
        lab = a.lab("L_dma")
        a(f"""
        s_lshl_b32 s52, s3, 10
        s_add_u32 m0, s52, {L_STG}
        s_mov_b32 s55, {sNB}
        {lab}:
        buffer_load_dwordx4 v9, {AR}, {sSOF} offen nt lds
        s_add_u32 m0, m0, 4096
        s_add_u32 {sSOF}, {sSOF}, s53
        s_sub_u32 s55, s55, 1
        s_cmp_lg_u32 s55, 0
        s_cbranch_scc1 {lab}
        s_waitcnt vmcnt(0) lgkmcnt(0)
        """)

    stage_dma()
    soft_barrier(0)
    stage_tr(64, 24, 10, 11)
    a(f"s_cmp_lg_u32 {sROLE}, 4\ns_cbranch_scc1 L_staged")
    soft_barrier(1)
    stage_dma()
    soft_barrier(2)
    stage_tr(160, 24, 10, 11)
    a(f"""
    L_staged:
    v_lshlrev_b32 v12, 4, v5
    v_add_u32 v12, {L_XV}, v12
    s_cmp_lg_u32 {sROLE}, 5
    s_cbranch_scc1 L_not5
    """)
    gemv(20, 16, 12)
    a(f"""
    s_lshl_b32 s52, {sID}, 8
    s_lshl_b32 s53, s3, 6
    s_add_u32 s52, s52, s53
    s_add_u32 s52, s52, {WS_MB}
    """)
    mod_publish("s52")
    a(f"""
    s_branch L_mid_done
    L_not5:
    """)
    a(f"""
    v_lshlrev_b32 v10, 2, v0
    s_mov_b32 s52, {WS_CLR}
    L_clrwait:
    """)
    spin_check()
    a(f"""
    s_sleep 8
    buffer_load_dword v13, v10, {WSR}, s52 offen sc1
    s_waitcnt vmcnt(0)
    v_cmp_ne_u32 vcc, {sTAG}, v13
    s_cbranch_vccnz L_clrwait
    s_cmp_eq_u32 {sROLE}, 2
    s_cbranch_scc1 L_mid_done
    """)
    srd(40, sX, 1280)
    a(f"""
    s_cmp_eq_u32 {sROLE}, 4
    s_cbranch_scc1 L_m4
    s_mul_i32 s52, s3, 640
    v_min_u32 v13, 39, v0
    v_lshlrev_b32 v13, 4, v13
    v_add_u32 v13, s52, v13               ; (160 w + 4p) * 4
    s_mov_b32 s53, {WS_MB + 2560}
    s_mov_b32 s54, {WS_MB + 5120}
    s_branch L_m34
    L_m4:
    s_lshl_b32 s52, {sID}, 8
    s_lshl_b32 s53, s3, 6
    s_add_u32 s52, s52, s53
    v_lshlrev_b32 v13, 4, v5
    v_add_u32 v13, s52, v13               ; (64 id + 16 w + 4 g) * 4
    s_mov_b32 s53, {WS_MB + 7680}
    s_mov_b32 s54, {WS_MB + 7680}
    L_m34:
    v_lshrrev_b32 v14, 1, v13
    s_mov_b32 s52, {WS_MB}
    buffer_load_dwordx2 v[28:29], v14, {BR}, 0 offen
    L_mbpoll:
    """)
    spin_check()
    a(f"""
    s_sleep 8
    buffer_load_dwordx4 v[16:19], v13, {WSR}, s52 offen sc1
    buffer_load_dwordx4 v[20:23], v13, {WSR}, s53 offen sc1
    buffer_load_dwordx4 v[24:27], v13, {WSR}, s54 offen sc1
    v_mov_b32 v15, 0
    s_waitcnt vmcnt(0)
    v_bitop3_b32 v15, v15, v18, {sTAG} bitop3:0xf6
    v_bitop3_b32 v15, v15, v22, {sTAG} bitop3:0xf6
    v_bitop3_b32 v15, v15, v26, {sTAG} bitop3:0xf6
    v_cmp_ne_u32 vcc, 0, v15
    s_cbranch_vccnz L_mbpoll
    """)
    unpack2(28, 44, 45); unpack2(29, 46, 47)
    unpack2(16, 48, 49); unpack2(17, 50, 51)
    unpack2(20, 52, 53); unpack2(21, 54, 55)
    unpack2(24, 56, 57); unpack2(25, 58, 59)
    for i in range(4): a(f"v_add_f32 v{56+i}, 1.0, v{56+i}")
    bf16_round2(56, 57); bf16_round2(58, 59)
    a("L_mid_done:")
    stamp(6, STAMPV_H)

    if DRY:
        a("""
        s_mov_b64 s[4:5], 0
        s_mov_b64 s[6:7], 0
        s_mov_b64 s[8:9], 0
        s_mov_b64 s[10:11], 0
        s_mov_b64 s[12:13], 0
        s_mov_b32 s14, 1
        s_mov_b64 exec, 0
        s_branch L_b5
        """)
    a("""
    L_dry_done:
    s_setprio 0
    s_mov_b64 exec, -1
    s_mov_b64 s[4:5], -1
    s_mov_b32 s6, 0x00010001
    s_mov_b32 s7, 0x00010001
    s_mov_b32 s8, -1
    s_mov_b32 s9, 0xff
    s_mov_b32 s10, 0
    s_mov_b32 s11, 0x80000000
    s_mov_b64 s[12:13], 1
    s_mov_b32 s14, 0
    """)
    sKN, sEST, sN, sR = "s76", "s77", "s78", "s79"
    a(f"""
    s_cmp_lg_u32 s3, 0
    s_cbranch_scc1 L_b5
    s_lshl_b32 s52, {sH}, 8
    s_add_u32 s52, s52, {WS_CNT}
    s_add_u32 s60, s{sWS}, s52
    s_addc_u32 s61, s{sWS+1}, 0
    s_mov_b32 {sKN}, {L_RB + 4*NSTAT}
    s_mov_b32 {sEST}, -1
    v_mov_b32 v10, 0
    L_grab:
    """)
    spin_check()
    a(f"""
    s_sleep 2
    ds_read_b128 v[16:19], v10 offset:{L_PROG}
    s_waitcnt lgkmcnt(0)
    v_max3_u32 v16, v16, v17, v18
    v_max_u32 v16, v16, v19
    v_readfirstlane_b32 s52, v16
    s_add_u32 s52, s52, {4*LA}
    s_cmp_lt_u32 s52, {sKN}
    s_cbranch_scc1 L_grab
    s_cmp_lg_u32 {sEST}, -1
    s_cbranch_scc1 L_grab1
    s_load_dword {sEST}, s[60:61], 0 glc
    s_waitcnt lgkmcnt(0)
    L_grab1:
    s_min_u32 s52, {sEST}, {PR}
    s_sub_u32 s52, {PR}, s52
    s_lshr_b32 s52, s52, {SH}
    s_max_u32 {sN}, s52, 1
    s_mov_b32 {sR}, {sN}
    s_atomic_add {sR}, s[60:61], 0 glc
    s_waitcnt lgkmcnt(0)
    s_min_u32 s53, {sR}, {PR}
    s_sub_u32 s52, {PR}, s53
    s_min_u32 s52, s52, {sN}
    s_mul_i32 s54, {sH}, {GPH}
    s_add_u32 s54, s54, s53
    s_lshl_b32 s54, s54, 2
    s_add_u32 s54, s54, {32*NSTAT}
    v_lshlrev_b32 v16, 2, v0
    v_add_u32 v17, s54, v16
    v_and_b32 v17, 2047, v17
    v_add_u32 v16, {sKN}, v16
    s_add_u32 s55, s53, {sN}
    s_cmp_ge_u32 s55, {PR}
    s_cselect_b32 s56, 1, 0
    v_mov_b32 v18, {END}
    v_cmp_gt_u32 vcc, s52, v0
    v_cndmask_b32 v17, v18, v17, vcc
    s_add_u32 s57, s52, s56
    v_cmp_gt_u32 vcc, s57, v0
    s_and_saveexec_b64 s[58:59], vcc
    ds_write_b32 v16, v17
    s_mov_b64 exec, -1
    s_lshl_b32 s52, s52, 2
    s_add_u32 {sKN}, {sKN}, s52
    s_lshl_b32 s52, {sN}, 3
    s_add_u32 {sEST}, {sR}, s52
    s_cmp_eq_u32 s56, 0
    s_cbranch_scc1 L_grab
    s_waitcnt lgkmcnt(0)
    L_b5:
    s_setprio 3
    """)
    stamp(7, STAMPV_H)
    a("s_cmp_lg_u32 s14, 0\ns_cbranch_scc1 L_nb1\ns_barrier\nL_nb1:")
    stamp(8, STAMPV_H)
    a(f"""
    s_cmp_lg_u32 s3, 0
    s_cbranch_scc1 L_t1_done
    v_lshlrev_b32 v10, 2, v0
    v_add_u32 v10, {L_PART}, v10
    v_mov_b32 v11, {L_ML}
    ds_read_b128 v[16:19], v11
    ds_read_b128 v[20:23], v11 offset:16
    """)
    T1R = [24 + i for i in range(20)] + [14, 15, 60, 61]
    for p in range(12):
        a(f"ds_read2st64_b32 v[{T1R[2*p]}:{T1R[2*p+1]}], v10 offset0:{2*p} offset1:{2*p+1}")
    a(f"""
    s_lshl_b32 s52, s2, 10
    s_add_u32 s52, s52, {WS_PO}
    s_lshl_b32 s53, s2, 4
    s_add_u32 s53, s53, {WS_PML}
    v_lshlrev_b32 v11, 4, v0
    s_waitcnt lgkmcnt(12)
    v_min3_f32 v8, v16, v18, v20
    v_min_f32 v8, v8, v22                 ; NMmin
    v_sub_f32 v16, v8, v16
    v_sub_f32 v18, v8, v18
    v_sub_f32 v20, v8, v20
    v_sub_f32 v22, v8, v22
    v_exp_f32 v16, v16
    v_exp_f32 v18, v18
    v_exp_f32 v20, v20
    v_exp_f32 v22, v22
    v_mul_f32 v9, v16, v17
    v_fmac_f32 v9, v18, v19
    v_fmac_f32 v9, v20, v21
    v_fmac_f32 v9, v22, v23               ; l
    s_waitcnt lgkmcnt(0)
    """)
    idx = lambda w, hi, t: T1R[6 * w + 3 * hi + t]
    for w in range(4):
        for t in range(3):
            a(f"v_add_f32 v{idx(w,0,t)}, v{idx(w,0,t)}, v{idx(w,1,t)}")
    for t in range(3):
        a(f"v_mul_f32 v{17+2*t}, v16, v{idx(0,0,t)}")
    for w in range(1, 4):
        for t in range(3):
            a(f"v_fmac_f32 v{17+2*t}, v{16+2*w}, v{idx(w,0,t)}")
    a(f"""
    v_mov_b32 v24, v17
    v_mov_b32 v25, v19
    v_mov_b32 v26, v21
    v_mov_b32 v27, {sTAG}
    v_mov_b32 v28, v8
    v_mov_b32 v29, v9
    v_mov_b32 v30, {sTAG}
    v_mov_b32 v31, {sTAG}
    buffer_store_dwordx4 v[24:27], v11, {WSR}, s52 offen sc1
    s_mov_b64 exec, s[12:13]
    buffer_store_dwordx4 v[28:31], v11, {WSR}, s53 offen sc1
    s_mov_b64 exec, s[4:5]
    L_t1_done:
    """)
    stamp(9, STAMPV_H)
    a(f"""
    s_cmp_eq_u32 {sROLE}, 3
    s_cbranch_scc1 L_t3
    s_cmp_eq_u32 {sROLE}, 4
    s_cbranch_scc1 L_t4
    s_cmp_eq_u32 {sROLE}, 2
    s_cbranch_scc0 L_hend
    """)
    a(f"""
    s_lshl_b32 s52, {sG}, 2
    s_add_u32 s52, s52, s3
    s_lshl_b32 s53, s52, 13
    s_add_u32 s53, s53, {WS_PO}
    s_lshl_b32 s54, s52, 7
    s_add_u32 s54, s54, {WS_PML}
    v_lshlrev_b32 v10, 4, v0
    v_lshlrev_b32 v11, 4, v4
    s_add_u32 s55, s53, 4096
    L_t2gate:
    """)
    spin_check()
    a(f"""
    buffer_load_dwordx4 v[48:51], v11, {WSR}, s54 offen sc1
    s_waitcnt vmcnt(0)
    v_cmp_ne_u32 s[78:79], {sTAG}, v50
    s_and_b32 s56, s78, 0xff
    s_bcnt1_i32_b32 s56, s56
    s_cmp_gt_u32 s56, {T2G}
    s_cbranch_scc1 L_t2gate
    """)
    for i in range(8): a(f"s_mov_b64 s[{80+2*i}:{81+2*i}], s[4:5]")
    a("L_t2poll:")
    stamp(14, STAMPV_H)
    spin_check()
    for i in range(8):
        lz = a.lab("L_z")
        a(f"s_mov_b64 exec, s[{80+2*i}:{81+2*i}]")
        if SKIPZ: a(f"s_cbranch_execz {lz}")
        a(f"buffer_load_dwordx4 v[{16+4*i}:{19+4*i}], v10, {WSR}, {'s53' if i < 4 else 's55'} offen offset:{1024*(i%4)} sc1")
        a(f"{lz}:")
    a(f"""
    s_mov_b64 exec, s[78:79]
    buffer_load_dwordx4 v[48:51], v11, {WSR}, s54 offen sc1
    s_mov_b64 exec, s[4:5]
    s_waitcnt vmcnt(0)
    v_cmp_ne_u32 s[78:79], {sTAG}, v50
    """)
    for i in range(8): a(f"v_cmp_ne_u32 s[{80+2*i}:{81+2*i}], {sTAG}, v{19+4*i}")
    a("s_or_b64 s[56:57], s[78:79], s[80:81]")
    for i in range(1, 8): a(f"s_or_b64 s[56:57], s[56:57], s[{80+2*i}:{81+2*i}]")
    a("s_cbranch_scc1 L_t2poll")
    stamp(10, STAMPV_H)
    a(f"""
    v_min_f32_dpp v52, v48, v48 row_ror:4 row_mask:0xf bank_mask:0xf
    v_min_f32_dpp v52, v52, v52 row_ror:2 row_mask:0xf bank_mask:0xf
    v_min_f32_dpp v52, v52, v52 row_ror:1 row_mask:0xf bank_mask:0xf
    v_sub_f32 v52, v52, v48
    v_exp_f32 v52, v52
    v_mul_f32 v53, v52, v49
    v_add_f32_dpp v53, v53, v53 row_ror:4 row_mask:0xf bank_mask:0xf
    v_add_f32_dpp v53, v53, v53 row_ror:2 row_mask:0xf bank_mask:0xf
    v_add_f32_dpp v53, v53, v53 row_ror:1 row_mask:0xf bank_mask:0xf
    v_rcp_f32 v53, v53
    v_mul_f32 v52, v52, v53
    """)
    for i in range(8): a(f"v_readlane_b32 s{80+i}, v52, {i}")
    a("s_mul_i32 s52, s3, 384\nv_lshl_add_u32 v11, v0, 1, s52")
    for t in range(3): a(f"v_mul_f32 v{54+t}, s80, v{16+t}")
    for i in range(1, 8):
        for t in range(3): a(f"v_fmac_f32 v{54+t}, s{80+i}, v{16+4*i+t}")
    a(f"""
    v_cvt_pk_bf16_f32 v54, v54, v55
    v_cvt_pk_bf16_f32 v56, v56, v56
    ds_write_b16 v11, v54 offset:{L_XV}
    ds_write_b16_d16_hi v11, v54 offset:{L_XV+128}
    ds_write_b16 v11, v56 offset:{L_XV+256}
    s_mul_i32 s52, {sG}, 2560
    s_lshl_b32 s53, {sK5}, 8
    s_add_u32 s52, s52, s53
    s_lshl_b32 s53, s3, 6
    s_add_u32 s52, s52, s53
    s_add_u32 s52, s52, {WS_AP}
    v_lshlrev_b32 v10, 4, v5
    s_waitcnt lgkmcnt(0)
    s_cmp_lg_u32 s14, 0
    s_cbranch_scc1 L_nb2
    s_barrier
    L_nb2:
    """)
    gemv(24, 16, 12)
    for i in range(4): a(f"v_min_u32 v{16+i}, -2, v{16+i}")
    a(f"""
    s_mov_b64 exec, s[6:7]
    buffer_store_dwordx4 v[16:19], v10, {WSR}, s52 offen sc1
    """)
    for r in range(1, RAP):
        a(f"s_add_u32 s52, s52, 20480\nbuffer_store_dwordx4 v[16:19], v10, {WSR}, s52 offen sc1")
    stamp(11, STAMPV_H)
    a("s_branch L_hend")

    def ap_poll(tag):
        rr = lambda i: 16 + 4 * i if i < 7 else 8
        a(f"s_sub_u32 s56, {sS}, 3\ns_min_u32 s56, s56, {RAP-1}\ns_mul_i32 s56, s56, 20480")
        for i in range(4): a(f"s_add_u32 s{52+i}, s56, {WS_AP + 5120*i}")
        for i in range(8): a(f"s_mov_b64 s[{80+2*i}:{81+2*i}], s[4:5]")
        if GATE3 == 1 and tag == 3:
            a(f"""
            s_lshl_b32 s56, s3, 10
            s_add_u32 s56, s56, {WS_PML}
            v_lshlrev_b32 v14, 4, v0
            L_gate3:
            """)
            spin_check()
            a(f"""
            s_sleep 4
            buffer_load_dword v15, v14, {WSR}, s56 offen offset:8 sc1
            s_waitcnt vmcnt(0)
            v_cmp_ne_u32 vcc, {sTAG}, v15
            s_cbranch_vccnz L_gate3
            """)
        if GATE3 == 2:
            a(f"""
            s_and_b32 s56, {sID}, 3
            s_mul_i32 s56, s56, 2560
            s_add_u32 s56, s56, s52
            s_add_u32 s57, s56, 10240
            L_gate{tag}:
            """)
            spin_check()
            a(f"""
            s_sleep 4
            buffer_load_dword v14, v13, {WSR}, s56 offen sc1
            buffer_load_dword v15, v13, {WSR}, s57 offen sc1
            s_waitcnt vmcnt(0)
            v_cmp_eq_u32 s[58:59], -1, v14
            v_cmp_eq_u32 vcc, -1, v15
            s_cmp_eq_u64 s[58:59], 0
            s_cbranch_scc1 L_ap{tag}
            s_cbranch_vccnz L_gate{tag}
            """)
        a(f"L_ap{tag}:")
        stamp(14, STAMPV_H)
        spin_check()
        for i in range(8):
            lz = a.lab("L_z")
            a(f"s_mov_b64 exec, s[{80+2*i}:{81+2*i}]")
            if SKIPZ: a(f"s_cbranch_execz {lz}")
            a(f"buffer_load_dwordx4 v[{rr(i)}:{rr(i)+3}], v13, {WSR}, s{52+i//2} offen offset:{2560*(i%2)} sc1")
            a(f"{lz}:")
        a("s_mov_b64 exec, s[4:5]\ns_waitcnt vmcnt(0)")
        for i in range(8): a(f"v_cmp_eq_u32 s[{80+2*i}:{81+2*i}], -1, v{rr(i)}")
        a("s_or_b64 s[56:57], s[80:81], s[82:83]")
        for i in range(2, 8): a(f"s_or_b64 s[56:57], s[56:57], s[{80+2*i}:{81+2*i}]")
        a(f"s_cbranch_scc1 L_ap{tag}")
        stamp(15, STAMPV_H)
        for (x, y) in ((0, 1), (2, 3), (4, 5), (6, 7), (0, 2), (4, 6), (0, 4)):
            for k in (0, 2): a(f"v_pk_add_f32 v[{rr(x)+k}:{rr(x)+k+1}], v[{rr(x)+k}:{rr(x)+k+1}], v[{rr(y)+k}:{rr(y)+k+1}]")
        bf16_round2(16, 17); bf16_round2(18, 19)
        for k in (0, 2): a(f"v_pk_mul_f32 v[{16+k}:{17+k}], v[{48+k}:{49+k}], v[{16+k}:{17+k}]")
        bf16_round2(16, 17); bf16_round2(18, 19)
        for k in (0, 2): a(f"v_pk_add_f32 v[{16+k}:{17+k}], v[{44+k}:{45+k}], v[{16+k}:{17+k}]")
        bf16_round2(16, 17); bf16_round2(18, 19)

    a("L_t3:")
    ap_poll(3)
    stamp(10, STAMPV_H)
    a(f"""
    v_readfirstlane_b32 s58, v16
    v_cmp_gt_u32 vcc, 40, v0
    v_mov_b32 v26, 0
    """)
    for k in range(4):
        a(f"v_subrev_f32 v{20+k}, s58, v{16+k}")
    a("""
    v_add_f32 v24, v20, v21
    v_mul_f32 v25, v20, v20
    v_add_f32 v24, v24, v22
    v_fmac_f32 v25, v21, v21
    v_add_f32 v24, v24, v23
    v_fmac_f32 v25, v22, v22
    v_fmac_f32 v25, v23, v23
    v_cndmask_b32 v24, v26, v24, vcc
    v_cndmask_b32 v25, v26, v25, vcc
    """)
    reduce64([24, 25])
    a(f"""
    v_mul_f32 v26, 0x3bcccccd, v24        ; S1/160
    v_fma_f32 v25, -v26, v24, v25         ; M2 = S2 - S1^2/160
    v_add_f32 v24, s58, v26               ; wave mean
    s_lshl_b32 s52, s3, 3
    v_mov_b32 v27, s52
    s_mov_b64 exec, s[10:11]
    ds_write_b64 v27, v[24:25] offset:{L_STAT}
    s_mov_b64 exec, s[4:5]
    v_mov_b32 v27, {L_STAT}
    s_waitcnt lgkmcnt(0)
    s_cmp_lg_u32 s14, 0
    s_cbranch_scc1 L_nb3
    s_barrier
    L_nb3:
    ds_read_b128 v[28:31], v27
    ds_read_b128 v[32:35], v27 offset:16
    v_lshrrev_b32 v14, 1, v13
    s_waitcnt lgkmcnt(0)
    v_add_f32 v24, v28, v30
    v_add_f32 v25, v32, v34
    v_add_f32 v24, v24, v25
    v_mul_f32 v24, 0.25, v24              ; mean
    v_add_f32 v25, v29, v31
    v_add_f32 v26, v33, v35
    v_add_f32 v25, v25, v26               ; sum M2
    v_sub_f32 v28, v28, v24
    v_sub_f32 v30, v30, v24
    v_sub_f32 v32, v32, v24
    v_sub_f32 v34, v34, v24
    v_mul_f32 v26, v28, v28
    v_fmac_f32 v26, v30, v30
    v_fmac_f32 v26, v32, v32
    v_fmac_f32 v26, v34, v34
    v_mul_f32 v25, 0x3acccccd, v25        ; /640
    v_fmac_f32 v25, 0.25, v26             ; + 160/640 * sum (mean_w - mean)^2
    """.replace("0.25,", "0x3e800000,"))
    bf16_round2(24, 25)
    a("v_add_f32 v25, 0x3727c5ac, v25")
    bf16_round1(25)
    a("v_sqrt_f32 v25, v25")
    bf16_round1(25)
    a("v_rcp_f32 v26, v25")
    for k in range(4): a(f"v_sub_f32 v{16+k}, v{16+k}, v24")
    bf16_round2(16, 17); bf16_round2(18, 19)
    for k in range(4): div_rn(20 + k, 16 + k, 25, 26, 28 + k)
    bf16_round2(20, 21); bf16_round2(22, 23)
    for k in range(4): a(f"v_mul_f32 v{20+k}, v{20+k}, v{56+k}")
    bf16_round2(20, 21); bf16_round2(22, 23)
    for k in range(4): a(f"v_add_f32 v{20+k}, v{20+k}, v{52+k}")
    a(f"""
    v_cvt_pk_bf16_f32 v20, v20, v21
    v_cvt_pk_bf16_f32 v21, v22, v23
    s_mov_b64 exec, s[8:9]
    ds_write_b64 v14, v[20:21] offset:{L_XV}
    s_mov_b64 exec, s[4:5]
    s_lshl_b32 s52, {sID}, 7
    s_lshl_b32 s53, s3, 5
    s_add_u32 s52, s52, s53
    s_add_u32 s52, s52, {WS_GU}
    v_lshlrev_b32 v10, 3, v5
    v_and_b32 v8, 3, v0
    v_cmp_eq_u32 s[58:59], 1, v8
    v_cmp_eq_u32 s[60:61], 2, v8
    v_cmp_eq_u32 s[62:63], 3, v8
    s_waitcnt lgkmcnt(0)
    s_cmp_lg_u32 s14, 0
    s_cbranch_scc1 L_nb4
    s_barrier
    L_nb4:
    """)
    gemv(20, 16, 12)
    a(f"""
    s_cmp_ge_u32 {sID}, 24
    s_cbranch_scc1 L_t3up
    v_cndmask_b32 v16, v16, v17, s[58:59]
    v_cndmask_b32 v16, v16, v18, s[60:61]
    v_cndmask_b32 v16, v16, v19, s[62:63]
    """)
    bf16_round1(16)
    import struct
    f2u = lambda x: struct.unpack('<I', struct.pack('<f', x))[0]
    c1 = -2.0 * 0.7978845608028654 * 1.4426950408889634
    a(f"""
    v_mul_f32 v17, v16, v16
    v_mov_b32 v18, 0x{f2u(c1):08x}
    v_fmac_f32 v18, 0x{f2u(c1*0.044715):08x}, v17
    v_mul_f32 v17, v16, v18
    v_exp_f32 v17, v17
    v_add_f32 v17, 1.0, v17
    v_rcp_f32 v17, v17
    v_mul_f32 v16, v16, v17
    v_mov_b32_dpp v17, v16 quad_perm:[1,1,1,1] row_mask:0xf bank_mask:0xf
    v_mov_b32_dpp v18, v16 quad_perm:[2,2,2,2] row_mask:0xf bank_mask:0xf
    v_mov_b32_dpp v19, v16 quad_perm:[3,3,3,3] row_mask:0xf bank_mask:0xf
    L_t3up:
    v_cvt_pk_bf16_f32 v16, v16, v17
    v_cvt_pk_bf16_f32 v17, v18, v19
    v_min_u32 v16, -2, v16
    v_min_u32 v17, -2, v17
    s_mov_b64 exec, s[6:7]
    buffer_store_dwordx2 v[16:17], v10, {WSR}, s52 offen sc1
    """)
    stamp(11, STAMPV_H)
    a("s_branch L_hend")
    a("L_t4:")
    ap_poll(4)
    stamp(10, STAMPV_H)
    for k in range(4): a(f"v_mov_b32 v{44+k}, v{16+k}")
    srd(44, sOUT, 1280)
    a(f"""
    s_lshl_b32 s52, s3, 10
    v_lshl_add_u32 v10, v0, 4, s52
    s_mov_b32 s53, {WS_GU}
    s_mov_b32 s54, {WS_GU + 3072}
    v_lshrrev_b32 v14, 1, v13
    s_cmp_eq_u32 s3, 3
    s_cbranch_scc1 L_t4b
    L_gupoll:
    """)
    stamp(16, STAMPV_H)
    spin_check()
    a(f"""
    buffer_load_dwordx4 v[16:19], v10, {WSR}, s53 offen sc1
    buffer_load_dwordx4 v[20:23], v10, {WSR}, s54 offen sc1
    s_waitcnt vmcnt(0)
    v_max3_u32 v24, v16, v18, v20
    v_max_u32 v24, v24, v22
    v_cmp_eq_u32 vcc, -1, v24
    s_cbranch_vccnz L_gupoll
    """)
    stamp(11, STAMPV_H)
    for k in range(4):
        unpack2(16 + k, 24, 25); unpack2(20 + k, 26, 27)
        a(f"v_mul_f32 v24, v24, v26\nv_mul_f32 v25, v25, v27\nv_cvt_pk_bf16_f32 v{16+k}, v24, v25")
    a(f"""
    ds_write_b128 v10, v[16:19] offset:{L_XV}
    s_waitcnt lgkmcnt(0)
    L_t4b:
    s_cmp_lg_u32 s14, 0
    s_cbranch_scc1 L_nb5
    s_barrier
    L_nb5:
    """)
    gemv(48, 16, 12, tmp=20, ntmp=6)
    bf16_round2(16, 17); bf16_round2(18, 19)
    for k in range(4): a(f"v_mul_f32 v{16+k}, v{52+k}, v{16+k}")
    bf16_round2(16, 17); bf16_round2(18, 19)
    for k in range(4): a(f"v_add_f32 v{16+k}, v{44+k}, v{16+k}")
    a(f"""
    v_cvt_pk_bf16_f32 v16, v16, v17
    v_cvt_pk_bf16_f32 v17, v18, v19
    s_mov_b64 exec, s[6:7]
    buffer_store_dwordx2 v[16:17], v14, {CR}, 0 offen
    """)
    dbgstamp(4)
    a(f"""
    s_or_b32 s52, {sID}, s3
    s_cmp_lg_u32 s52, 0
    s_cbranch_scc1 L_hend
    s_add_u32 s52, {sE}, 1
    v_mov_b32 v18, s52
    v_mov_b32 v19, 0
    s_mov_b64 exec, s[12:13]
    buffer_store_dword v18, v19, {WSR}, 0 offen
    L_hend:
    """)
    a("s_cmp_lg_u32 s14, 0\ns_cbranch_scc1 L_dry_done")
    stamp(12, STAMPV_H)
    stamp_dump(STAMPV_H)
    a("s_endpgm")

    RING = 56
    D0, D1, ACC, Q = 20, 24, 28, 40
    sW, sOFF, sIDX, sEND, sV_ = "s52", "s53", "s54", "s55", "s56"
    a("L_stream:")
    if prof: a(f"v_mov_b32 v{STAMPV_S}, 0\nv_mov_b32 v53, 0\nv_mov_b32 v54, 0\ns_mov_b32 s63, 0")
    stamp(0, STAMPV_S)
    a(f"""
    s_sub_u32 {sW}, s3, 4
    v_bfe_u32 v1, v0, 1, 3
    v_mul_u32_u24 v1, 384, v1
    v_and_b32 v2, 1, v0
    v_lshl_add_u32 v1, v2, 6, v1
    v_lshrrev_b32 v12, 4, v0
    v_lshl_add_u32 v1, v12, 4, v1
    v_add_u32 v2, 3072, v1
    v_lshrrev_b32 v3, 3, v0
    v_mul_u32_u24 v3, 384, v3
    v_and_b32 v13, 7, v0
    v_lshl_add_u32 v3, v13, 4, v3
    v_add_u32 v4, 3072, v3
    s_mul_i32 s57, {sH}, {HEADBYTES}
    s_mul_hi_u32 s58, {sH}, {HEADBYTES}
    s_mul_i32 s64, {sH}, {GPH}
    s_add_u32 s64, s64, {sS}
    s_lshl_b32 s64, s64, 2
    s_add_u32 s64, s64, {sW}
    s_and_b32 s64, s64, 2047
    s_mul_i32 {sOFF}, s64, 6144
    s_mov_b32 s38, {HEADBYTES}
    s_mov_b32 s39, 0x20000
    s_mov_b32 s42, {HEADBYTES}
    s_mov_b32 s43, 0x20000
    s_waitcnt lgkmcnt(0)
    s_add_u32 s36, s{sK}, s57
    s_addc_u32 s37, s{sK+1}, s58
    s_add_u32 s40, s{sV}, s57
    s_addc_u32 s41, s{sV+1}, s58
    """)
    if dbgt:
        a("s_cmp_lg_u32 s3, 4\ns_cbranch_scc1 L_nd0")
        dbgstamp(0, True); dbgstamp(1)
        a("L_nd0:")
    a("s_barrier")

    def kloads(slot):
        r0 = RING + 48 * slot
        for j in range(6):
            a(f"buffer_load_dwordx4 v[{r0+4*j}:{r0+4*j+3}], v{1+j//3}, {AR}, {sOFF} offen offset:{128*(j%3)} nt")

    def vloads(slot):
        r0 = RING + 48 * slot + 24
        for j in range(6):
            a(f"buffer_load_dwordx4 v[{r0+4*j}:{r0+4*j+3}], v{3+j//3}, {BR}, {sOFF} offen offset:{128*(j%3)} nt")
    grp = 0
    def pace():
        nonlocal grp
        if 6 * grp > PACE: a(f"s_waitcnt vmcnt({PACE})")
        grp += 1
    for s in range(R):
        pace(); kloads(s); pace(); vloads(s)
        a(f"s_add_u32 s64, s64, 32\ns_and_b32 s64, s64, 2047\ns_mul_i32 {sOFF}, s64, 6144")
    a(f"""
    s_mul_i32 s59, {sW}, {NL*12288}
    s_add_u32 s59, s59, {L_STG}
    s_mov_b32 {sIDX}, {L_RB + 4*R}
    s_mov_b32 s61, 0
    """)
    if NL:
        a(f"s_cmp_lg_u32 s62, 0\ns_cbranch_scc1 L_nolds\ns_mov_b32 {sIDX}, {L_RB + 4*NPRE}\ns_mov_b32 s61, {NL}")
    for n in range(NL):
        for j in range(12):
            if j % 6 == 0: pace()
            off = 128 * (j % 3)
            a(f"s_add_u32 m0, s59, {n*12288 + j*1024 - off}")
            if j < 6: a(f"buffer_load_dwordx4 v{1+j//3}, {AR}, {sOFF} offen offset:{off} nt lds")
            else: a(f"buffer_load_dwordx4 v{3+(j-6)//3}, {BR}, {sOFF} offen offset:{off} nt lds")
        a(f"s_add_u32 s64, s64, 32\ns_and_b32 s64, s64, 2047\ns_mul_i32 {sOFF}, s64, 6144")
    if NL: a("L_nolds:")
    stamp(1, STAMPV_S)
    a(f"""
    v_and_b32 v14, 1, v0
    v_lshlrev_b32 v14, 4, v14
    v_mov_b32 v15, 0xffff
    v_lshlrev_b32 v14, v14, v15           ; 0xffff << 16*(l&1)
    v_lshrrev_b32 v13, 1, v13             ; (l&7)>>1
    v_mov_b32 v15, 0
    """)
    for r in range(4):
        a(f"v_cmp_eq_u32 vcc, {r}, v13\nv_cndmask_b32 v{5+r}, v15, v14, vcc")
    a(f"""
    v_mov_b32 v9, 0xff800000
    v_mov_b32 v10, 0x7f800000
    v_mov_b32 v11, 0
    """)
    for i in range(12): a(f"v_mov_b32 v{ACC+i}, 0")
    a(f"""
    s_lshl_b32 s57, {sW}, 2
    v_mov_b32 v18, s57
    s_mov_b32 s60, 1
    s_mov_b32 {sEND}, 0
    v_mov_b32 v17, {sIDX}
    v_bfe_u32 v13, v0, 3, 1
    v_lshlrev_b32 v13, 6, v13
    v_lshl_add_u32 v13, v12, 4, v13
    ds_read_b32 v16, v17
    L_qwait:
    """)
    spin_check()
    a(f"""
    s_sleep 1
    ds_read_b128 v[{Q}:{Q+3}], v13 offset:{L_QV}
    ds_read_b128 v[{Q+4}:{Q+7}], v13 offset:{L_QV+128}
    ds_read_b128 v[{Q+8}:{Q+11}], v13 offset:{L_QV+256}
    s_waitcnt lgkmcnt(0)
    v_max3_u32 v14, v{Q}, v{Q+1}, v{Q+2}
    v_max3_u32 v15, v{Q+3}, v{Q+4}, v{Q+5}
    v_max3_u32 v14, v14, v{Q+6}, v{Q+7}
    v_max3_u32 v15, v15, v{Q+8}, v{Q+9}
    v_max3_u32 v14, v14, v{Q+10}, v{Q+11}
    v_max_u32 v14, v14, v15
    v_cmp_eq_u32 vcc, -1, v14
    s_cbranch_vccnz L_qwait
    """)
    stamp(2, STAMPV_S)
    W = 12 * (D - 1) + 6

    def qk(slot):
        k0 = RING + 48 * slot
        for t in range(3):
            for u in range(2):
                d = D0 if u == 0 else D1
                c = "0" if t == 0 else f"v[{d}:{d+3}]"
                kr = k0 + 12 * u + 4 * t
                a(f"v_mfma_f32_16x16x32_bf16 v[{d}:{d+3}], v[{kr}:{kr+3}], v[{Q+4*t}:{Q+4*t+3}], {c}")

    def softmax():
        nr = a.lab("L_nr")
        a(f"""
        v_add_f32_dpp v12, v{D0+1}, v{D0} row_ror:8 row_mask:0xf bank_mask:0x3
        v_add_f32_dpp v13, v{D1+1}, v{D1} row_ror:8 row_mask:0xf bank_mask:0x3
        v_add_f32_dpp v12, v{D0+2}, v{D0+3} row_ror:8 row_mask:0xf bank_mask:0xc
        v_add_f32_dpp v13, v{D1+2}, v{D1+3} row_ror:8 row_mask:0xf bank_mask:0xc
        """)
        bf16_round2(12, 13)
        a(f"v_mul_f32 v12, 0x{SCALE:08x}, v12\nv_mul_f32 v13, 0x{SCALE:08x}, v13")
        bf16_round2(12, 13)
        a(f"""
        v_max_f32 v15, v12, v13
        v_cmp_gt_f32 vcc, v15, v9
        s_cbranch_vccz {nr}
        s_call_b64 s[66:67], L_rare
        {nr}:
        v_fmamk_f32 v12, v12, 0x{LOG2E:08x}, v10
        v_fmamk_f32 v13, v13, 0x{LOG2E:08x}, v10
        v_exp_f32 v12, v12
        v_exp_f32 v13, v13
        v_add_f32 v11, v11, v12
        v_cvt_pk_bf16_f32 v14, v12, v12
        v_cvt_pk_bf16_f32 v15, v13, v13
        v_add_f32 v11, v11, v13
        """)
        for r in range(4): a(f"v_and_b32 v{D0+r}, v14, v{5+r}")
        for r in range(4): a(f"v_and_b32 v{D1+r}, v15, v{5+r}")

    def pv(slot):
        v0 = RING + 48 * slot + 24
        for u in range(2):
            for t in range(3):
                d = D0 if u == 0 else D1
                vr = v0 + 12 * u + 4 * t
                a(f"v_mfma_f32_16x16x32_bf16 v[{ACC+4*t}:{ACC+4*t+3}], v[{d}:{d+3}], v[{vr}:{vr+3}], v[{ACC+4*t}:{ACC+4*t+3}]")

    a("L_loop:")
    for s in range(D):
        a(f"s_waitcnt vmcnt({W})")
        qk(s)
        if prof: a("s_memrealtime s[98:99]")
        a("s_waitcnt lgkmcnt(0)")
        if prof:
            pl = a.lab("L_pg")
            a(f"""
            s_and_b32 m0, s63, 63
            s_cmp_ge_u32 s63, 64
            s_cbranch_scc1 {pl}a
            v_writelane_b32 v53, s98, m0
            s_branch {pl}b
            {pl}a:
            v_writelane_b32 v54, s98, m0
            {pl}b:
            s_add_u32 s63, s63, 1
            """)
        a(f"""
        v_readfirstlane_b32 {sV_}, v16
        s_cmp_eq_u32 {sV_}, -1
        s_cbranch_scc1 L_rbw{s}
        L_rbok{s}:
        s_add_u32 s57, {sV_}, {sW}
        s_mul_i32 s57, s57, 6144
        s_cmp_eq_u32 {sV_}, {END}
        s_cselect_b32 {sOFF}, 0, s57
        s_cselect_b32 s38, 0, s38
        s_cselect_b32 s42, 0, s42
        s_cselect_b32 s57, 0, 4
        s_addc_u32 {sEND}, {sEND}, 0
        s_add_u32 {sIDX}, {sIDX}, s57
        v_mov_b32 v17, {sIDX}
        """)
        kloads(s)
        a("ds_read_b32 v16, v17\nds_write_b32 v18, v17")
        softmax()
        a(f"s_waitcnt vmcnt({W})")
        pv(s)
        a(f"s_cmp_eq_u32 {sEND}, {D}\ns_cbranch_scc1 L_sdone")
        vloads(s)
    a("s_cmp_eq_u32 s60, 0\ns_cbranch_scc1 L_loop")
    a(f"s_waitcnt vmcnt({12*D})")
    for s in range(D, 3):
        qk(s); softmax(); pv(s)
    a(f"""
    s_mov_b32 s60, s61
    v_lshlrev_b32 v52, 4, v0
    v_add_u32 v52, s59, v52
    L_det:
    """)
    qk(3); softmax(); pv(3)
    if NL:
        a("s_cmp_eq_u32 s60, 0\ns_cbranch_scc1 L_detx")
        for j in range(12):
            a(f"ds_read_b128 v[{RING+144+4*j}:{RING+144+4*j+3}], v52 offset:{1024*j}")
        a(f"""
        v_add_u32 v52, 12288, v52
        s_sub_u32 s60, s60, 1
        s_waitcnt lgkmcnt(0)
        s_branch L_det
        L_detx:
        v_mov_b32 v52, 1
        ds_write_b32 v18, v52 offset:{L_FREE}
        """)
    a("s_branch L_loop")
    for s in range(D):
        a(f"L_rbw{s}:")
        spin_check()
        a(f"""
        ds_read_b32 v16, v17
        s_waitcnt lgkmcnt(0)
        v_readfirstlane_b32 {sV_}, v16
        s_cmp_eq_u32 {sV_}, -1
        s_cbranch_scc1 L_rbw{s}
        s_branch L_rbok{s}
        """)
    a(f"""
    L_rare:
    v_max_f32_dpp v15, v15, v15 row_ror:8 row_mask:0xf bank_mask:0xf
    v_max_f32_dpp v15, v15, v15 row_bcast:15 row_mask:0xa bank_mask:0xf
    v_max_f32_dpp v15, v15, v15 row_bcast:31 row_mask:0xc bank_mask:0xf
    v_readlane_b32 s57, v15, 63
    v_mov_b32 v9, s57
    v_mul_f32 v15, 0x{0x80000000 | LOG2E:08x}, v9
    v_sub_f32 v14, v15, v10
    v_exp_f32 v14, v14
    v_mov_b32 v10, v15
    v_mul_f32 v11, v11, v14
    """)
    for i in range(12): a(f"v_mul_f32 v{ACC+i}, v{ACC+i}, v14")
    a("s_setpc_b64 s[66:67]")
    a("L_sdone:")
    stamp(3, STAMPV_S)
    if dbgt:
        a("s_cmp_lg_u32 s3, 4\ns_cbranch_scc1 L_nd1")
        dbgstamp(2, True); dbgstamp(3)
        a("L_nd1:")
    a(f"""
    v_add_f32_dpp v11, v11, v11 row_ror:8 row_mask:0xf bank_mask:0xf
    v_and_b32 v12, 7, v0
    v_lshlrev_b32 v12, 5, v12
    v_add_f32_dpp v11, v11, v11 row_bcast:15 row_mask:0xa bank_mask:0xf
    v_bfe_u32 v13, v0, 4, 1
    v_lshl_add_u32 v12, v13, 4, v12
    v_add_f32_dpp v11, v11, v11 row_bcast:31 row_mask:0xc bank_mask:0xf
    v_lshrrev_b32 v13, 5, v0
    v_mul_u32_u24 v13, 768, v13
    s_mul_i32 s57, {sW}, 1536
    v_add3_u32 v12, v12, v13, s57
    s_lshl_b32 s57, {sW}, 3
    v_mov_b32 v13, s57
    s_mov_b32 exec_lo, 0x00ff00ff
    s_mov_b32 exec_hi, 0xff00ff00
    ds_write_b128 v12, v[{ACC}:{ACC+3}] offset:{L_PART}
    ds_write_b128 v12, v[{ACC+4}:{ACC+7}] offset:{L_PART+256}
    ds_write_b128 v12, v[{ACC+8}:{ACC+11}] offset:{L_PART+512}
    s_mov_b32 exec_lo, 0
    s_mov_b32 exec_hi, 0x80000000
    ds_write_b64 v13, v[10:11] offset:{L_ML}
    s_waitcnt lgkmcnt(0)
    s_barrier
    """)
    stamp_dump(STAMPV_S)
    if prof:
        a(f"""
        v_add_u32 v1, 0x80000, v1
        global_store_dword v1, v53, s[{sWS}:{sWS+1}]
        v_add_u32 v1, 0x80000, v1
        global_store_dword v1, v54, s[{sWS}:{sWS+1}]
        s_waitcnt vmcnt(0)
        """)
    a(f"""
    s_endpgm
    L_fail:
    s_mov_b64 exec, 1
    s_lshl_b32 s52, s2, 3
    s_add_u32 s52, s52, s3
    s_or_b32 s52, s52, 0xdead0000
    v_mov_b32 v1, 0
    v_mov_b32 v2, s52
    global_store_dword v1, v2, s[{sDBG}:{sDBG+1}]
    L_exit:
    s_endpgm
    """)

    body = pad(a.L)
    hdr = open(os.path.join(os.path.dirname(os.path.abspath(__file__)), "..", "cdna_kernels", NAME + ".s.ref")).read().split("\n")
    hdr = [l for l in hdr if l.startswith(";") and "@launch" not in l and "Override launch" not in l and "grid=ceil" not in l]
    out = hdr + [f"; @launch grid=(256,1,1) block=(512,1,1) lds={LDS_BYTES}",
                 '.amdgcn_target "amdgcn-amd-amdhsa--gfx950"', ".text", f".globl {NAME}_kernel", ".p2align 8",
                 f".type {NAME}_kernel,@function", f"{NAME}_kernel:"] + body + [
        '.section .rodata,"a"', ".p2align 6", f".amdhsa_kernel {NAME}_kernel",
        "  .amdhsa_next_free_vgpr 256", "  .amdhsa_next_free_sgpr 102", "  .amdhsa_accum_offset 256",
        "  .amdhsa_group_segment_fixed_size 0", "  .amdhsa_kernarg_size 112", "  .amdhsa_user_sgpr_count 2",
        "  .amdhsa_user_sgpr_kernarg_segment_ptr 1", "  .amdhsa_system_sgpr_workgroup_id_x 1",
        "  .amdhsa_float_denorm_mode_32 3", ".end_amdhsa_kernel"]
    return "\n".join(out) + "\n"


if __name__ == "__main__":
    outp = sys.argv[1]
    kw = eval("dict(" + (sys.argv[2] if len(sys.argv) > 2 else "") + ")")
    open(outp, "w").write(gen(**kw))
```

```python
import sys, os
sys.path.insert(0, os.path.dirname(os.path.abspath(__file__)))
from asmlib import Asm, pad

NAME = "adaLN_cond__mha_block_cached__glu_gated_geglu__decode"

WS_EPOCH = 0
WS_CLR = 256
WS_CNT = 4096
WS_MOD = 0x4000
WS_Q = 0x8000
WS_PO = 0x80000
WS_PML = 0xC0000
WS_MB = WS_MOD + 5120
WS_GU = 0xC4000
WS_AP = 0xC5800
WS_USED = 0x100000
WS_STAMP = 0x100000
L_PROG = 0
L_SB = 16
L_FREE = 32
L_FL0 = 48
L_SB2 = 64
L_RB = 128
L_QV = 1152
L_XV = 2048
L_PART = 5120
L_ML = 11264
L_STAT = 11328
L_STG = 12288

END = 0x7FFFFFFF
OOB = 0x4000000
LOG2E = 0x3FB8AA3B
SCALE = 0x3D93CD3A
HEADBYTES = 32768 * 384

sX, sK, sV, sWQ, sWO, sGATE, sUP, sDOWN, sC, sWM, sOUT, sDBG, sWS = 4, 6, 8, 10, 12, 16, 18, 20, 22, 24, 26, 28, 30
WSR = "s[32:35]"; AR = "s[36:39]"; BR = "s[40:43]"; CR = "s[44:47]"
sH, sS, sTAG, sE = "s48", "s49", "s50", "s51"
sSPIN = "s68"


def gen(NSTAT=52, D=2, NL=3, prof=False, SH=3, LA=0, dbgt=False, PACE=10, HOLD=9, HOLDM=True, SLOW=0, DLY=0, JIT=0, MINT=True, EM=8, NMIN=1, EARLY=False, LATEK=False, GSL=2, H3=False, PQ=3, SQ=12, GPH=5, T2G=8, GATE3=0, RAP=1, DRY=True, SKIPZ=True, QD=0, XP=''):
    a = Asm()
    PR = 512 - 8 * NSTAT
    R = 4
    NPRE = R + NL
    assert NSTAT <= 64 and NSTAT >= NPRE + D and NSTAT + PR + 1 <= 256
    LDS_BYTES = L_STG + max(98304, NL * 49152)
    STAMPV_S, STAMPV_H = 19, 63

    def stamp(i, v):
        if prof:
            a(f"""
            s_memrealtime s[98:99]
            s_waitcnt lgkmcnt(0)
            v_writelane_b32 v{v}, s98, {i}
            """)

    def stamp_dump(v):
        if prof:
            a(f"""
            s_mov_b64 exec, -1
            s_lshl_b32 s98, s2, 3
            s_add_u32 s98, s98, s3
            s_lshl_b32 s98, s98, 8
            s_add_u32 s98, s98, {WS_STAMP}
            v_lshlrev_b32 v1, 2, v0
            v_add_u32 v1, s98, v1
            global_store_dword v1, v{v}, s[{sWS}:{sWS+1}]
            s_waitcnt vmcnt(0)
            """)

    def dbgstamp(slot, inv=False):
        if dbgt:
            a(f"""
            s_memrealtime s[98:99]
            s_mov_b64 s[96:97], exec
            s_waitcnt lgkmcnt(0)
            {"s_not_b32 s98, s98" if inv else ""}
            s_mov_b64 exec, 1
            v_mov_b32 v254, s98
            v_mov_b32 v255, {4*slot}
            global_atomic_umax v255, v254, s[{sDBG}:{sDBG+1}] sc1
            s_mov_b64 exec, s[96:97]
            """)

    def spin_check():
        a(f"s_sub_u32 {sSPIN}, {sSPIN}, 1\ns_cbranch_scc1 L_fail")

    def srd(r, base, size):
        a(f"""
        s_mov_b32 s{r}, s{base}
        s_mov_b32 s{r+1}, s{base+1}
        s_mov_b32 s{r+2}, {size}
        s_mov_b32 s{r+3}, 0x20000
        """)

    def bf16_round1(v, t=None):
        a(f"v_cvt_pk_bf16_f32 v{v}, v{v}, v{v}\nv_and_b32 v{v}, 0xffff0000, v{v}")

    def bf16_round2(v0, v1):
        a(f"""
        v_cvt_pk_bf16_f32 v{v1}, v{v0}, v{v1}
        v_lshlrev_b32 v{v0}, 16, v{v1}
        v_and_b32 v{v1}, 0xffff0000, v{v1}
        """)

    def unpack2(src, lo, hi):
        assert lo != src
        a(f"v_lshlrev_b32 v{lo}, 16, v{src}\nv_and_b32 v{hi}, 0xffff0000, v{src}")

    def reduce64(vs):
        for m in ("row_ror:8 row_mask:0xf", "row_ror:4 row_mask:0xf", "row_ror:2 row_mask:0xf", "row_ror:1 row_mask:0xf",
                  "row_bcast:15 row_mask:0xa", "row_bcast:31 row_mask:0xc"):
            for v in vs:
                a(f"v_add_f32_dpp v{v}, v{v}, v{v} {m} bank_mask:0xf")

    def silu(x, t):
        a(f"""
        v_mul_f32 v{t}, 0x{0x80000000 | LOG2E:08x}, v{x}
        v_exp_f32 v{t}, v{t}
        v_add_f32 v{t}, 1.0, v{t}
        v_rcp_f32 v{t+1}, v{t}
        v_mul_f32 v{t+2}, v{x}, v{t+1}
        v_fma_f32 v{t}, -v{t+2}, v{t}, v{x}
        v_fma_f32 v{x}, v{t}, v{t+1}, v{t+2}
        v_cmp_class_f32 vcc, v{x}, 3
        v_cndmask_b32 v{x}, v{x}, v{t+2}, vcc
        """)

    def div_rn(q, n, d, r, t):
        a(f"""
        v_mul_f32 v{q}, v{n}, v{r}
        v_fma_f32 v{t}, -v{q}, v{d}, v{n}
        v_fmac_f32 v{q}, v{t}, v{r}
        """)

    def soft_barrier(idx):
        lab = a.lab("L_sb")
        a(f"""
        v_mov_b32 v1, {L_SB + 4*idx if idx < 4 else L_SB2}
        v_mov_b32 v2, 1
        s_mov_b64 exec, 1
        ds_add_u32 v1, v2
        s_mov_b64 exec, -1
        {lab}:
        """)
        spin_check()
        a(f"""
        ds_read_b32 v2, v1
        s_waitcnt lgkmcnt(0)
        v_readfirstlane_b32 s52, v2
        s_cmp_lt_u32 s52, 4
        s_cbranch_scc1 {lab}
        """)

    def gemv(nkb, D, xaddr, wbase=64, tmp=32, ntmp=7):
        for i in range(min(ntmp, nkb)):
            a(f"ds_read_b128 v[{tmp+4*i}:{tmp+4*i+3}], v{xaddr} offset:{64*i}")
        for kb in range(nkb):
            outstanding = min(ntmp, nkb - kb) - 1
            t = tmp + 4 * (kb % ntmp)
            a(f"s_waitcnt lgkmcnt({outstanding})")
            c = "0" if kb == 0 else f"v[{D}:{D+3}]"
            a(f"v_mfma_f32_16x16x32_bf16 v[{D}:{D+3}], v[{wbase+4*kb}:{wbase+4*kb+3}], v[{t}:{t+3}], {c}")
            if kb + ntmp < nkb:
                a(f"ds_read_b128 v[{t}:{t+3}], v{xaddr} offset:{64*(kb+ntmp)}")

    a(f"""
    s_cmp_ge_u32 s2, 256
    s_cbranch_scc1 L_exit
    s_load_dwordx16 s[4:19], s[0:1], 0
    s_load_dwordx8 s[20:27], s[0:1], 64
    s_load_dwordx4 s[28:31], s[0:1], 96
    v_lshrrev_b32 v1, 6, v0
    v_and_b32 v0, 63, v0
    s_lshr_b32 {sH}, s2, 3
    v_readfirstlane_b32 s3, v1
    s_and_b32 {sS}, s2, 7
    s_mov_b32 {sSPIN}, 0x40000
    s_sub_u32 s63, {sS}, {sH}
    s_and_b32 s63, s63, 7
    s_cmp_eq_u32 s63, 3
    s_cselect_b32 s62, 1, 0
    s_cmp_lt_u32 {sH}, 20
    s_cselect_b32 s62, s62, 0
    s_cmp_lt_u32 s63, 3
    s_cselect_b32 s62, 2, s62
    {"s_mov_b32 s62, 0" if 'noq' in XP else ""}
    s_cmp_ge_u32 s3, 4
    s_cbranch_scc1 L_stream
    """)
    sISM = "s62"

    def ppoll(tag, P, nld, stagger, issue, check, take):
        for b in range(P):
            issue(b)
            if b < P - 1: a(f"s_sleep {stagger}")
        a(f"L_pp{tag}:")
        for b in range(P):
            a(f"s_waitcnt vmcnt({nld*(P-1)})")
            check(b)
            a(f"s_cbranch_vccz L_pp{tag}_{b}")
            if b == 0: spin_check()
            issue(b)
        a(f"s_branch L_pp{tag}")
        for b in range(P):
            a(f"L_pp{tag}_{b}:")
            take(b)
            if b < P - 1: a(f"s_branch L_pp{tag}_x")
        a(f"L_pp{tag}_x:")

    def tag_calc():
        a(f"s_mul_i32 {sTAG}, {sE}, 0x9E3779B1\ns_add_u32 {sTAG}, {sTAG}, 0x7F4A7C15")

    def silu_slice():
        unpack2(12, 14, 15); unpack2(13, 16, 17)
        for i in range(4): silu(14 + i, 18)
        a(f"""
        v_cvt_pk_bf16_f32 v12, v14, v15
        v_cvt_pk_bf16_f32 v13, v16, v17
        s_mov_b32 exec_hi, 0xff
        ds_write_b64 v10, v[12:13] offset:{L_XV}
        s_mov_b64 exec, -1
        """)

    def stage_tr(wbase, nkb, va0, va1):
        for kb in range(nkb):
            for u in range(2):
                r = wbase + 4 * kb + 2 * u
                va, off = (va0, kb * 4096 + u * 512) if kb < 16 else (va1, (kb - 16) * 4096 + u * 512)
                a(f"ds_read_b64_tr_b16 v[{r}:{r+1}], v{va} offset:{off}")
            if kb % 4 == 3: a("s_waitcnt lgkmcnt(6)" if kb < nkb - 1 else "s_waitcnt lgkmcnt(0)")

    def mod_publish(soff):
        a(f"""
        v_lshlrev_b32 v10, 4, v5
        v_mov_b32 v22, {sTAG}
        v_mov_b32 v23, {sTAG}
        v_cvt_pk_bf16_f32 v20, v16, v17
        v_cvt_pk_bf16_f32 v21, v18, v19
        s_mov_b32 exec_lo, 0x00010001
        s_mov_b32 exec_hi, 0x00010001
        buffer_store_dwordx4 v[20:23], v10, {WSR}, {soff} offen sc1
        s_mov_b64 exec, -1
        """)

    a("s_setprio 3")
    if prof: a(f"v_mov_b32 v{STAMPV_H}, 0")
    stamp(0, STAMPV_H)
    a(f"""
    v_lshrrev_b32 v3, 3, v0
    v_and_b32 v4, 7, v0
    v_lshrrev_b32 v5, 4, v0
    v_and_b32 v6, 15, v0
    v_lshrrev_b32 v7, 2, v6
    v_lshl_add_u32 v7, v5, 3, v7
    v_lshlrev_b32 v7, 7, v7
    v_and_b32 v8, 3, v6
    v_lshl_add_u32 v7, v8, 3, v7
    v_lshlrev_b32 v11, 2, v0
    v_mov_b32 v12, -1
    v_mov_b32 v13, -1
    s_cmp_eq_u32 s3, 2
    s_cbranch_scc1 L_init2
    s_cmp_eq_u32 s3, 1
    s_cbranch_scc0 L_init3
    s_mul_i32 s52, {sH}, {GPH}
    s_add_u32 s52, s52, {sS}
    s_lshl_b32 s52, s52, 2
    v_lshlrev_b32 v10, 5, v0
    v_add_u32 v10, s52, v10
    v_and_b32 v10, 2047, v10
    v_cmp_gt_u32 vcc, {NSTAT}, v0
    v_cndmask_b32 v10, v12, v10, vcc
    ds_write_b32 v11, v10 offset:{L_RB}
    ds_write_b32 v11, v12 offset:{L_RB+256}
    ds_write_b32 v11, v12 offset:{L_RB+512}
    ds_write_b32 v11, v12 offset:{L_RB+768}
    s_branch L_init_done
    L_init2:
    v_lshlrev_b32 v10, 3, v0
    ds_write_b64 v10, v[12:13] offset:{L_QV}
    s_branch L_init_done
    L_init3:
    v_and_b32 v10, 31, v0
    v_lshlrev_b32 v10, 2, v10
    v_mov_b32 v12, 0
    ds_write_b32 v10, v12 offset:0
    L_init_done:
    v_min_u32 v13, 39, v0
    s_mul_i32 s52, s3, 320
    v_lshl_add_u32 v10, v13, 3, s52       ; v10 = (160 w + 4 p) * 2
    s_lshl_b32 s58, s3, 2
    s_waitcnt lgkmcnt(0)
    s_load_dword {sE}, s[{sWS}:{sWS+1}], {WS_EPOCH}
    """)
    srd(32, sWS, WS_USED)
    a(f"""
    s_cmp_eq_u32 {sISM}, 0
    s_cbranch_scc1 L_issued
    s_mov_b32 s39, 0x20000
    s_cmp_eq_u32 {sISM}, 2
    s_cbranch_scc1 L_pq
    """)
    srd(44, sC, 1280)
    a(f"""
    buffer_load_dwordx2 v[12:13], v10, {CR}, 0 offen
    s_mov_b32 s36, s{sWM}
    s_mov_b32 s37, s{sWM+1}
    s_mov_b32 s38, {640*7680}
    s_mov_b32 s57, 7680
    s_lshl_b32 s56, {sH}, 7
    s_lshl_b32 s59, {sH}, 8
    s_add_u32 s59, s59, {WS_MOD}
    s_branch L_pdma
    L_pq:
    """)
    srd(40, sX, 1280)
    for i in range(5):
        a(f"buffer_load_dword v{24+i}, v11, {BR}, 0 offen offset:{256*i}")
    a(f"""
    buffer_load_dwordx2 v[30:31], v10, {BR}, 0 offen
    s_mov_b32 s36, s{sWQ}
    s_mov_b32 s37, s{sWQ+1}
    s_mov_b32 s38, {640*12288}
    s_mov_b32 s57, 12288
    s_mul_i32 s53, {sH}, 3
    s_add_u32 s53, s53, s63
    s_lshl_b32 s56, s53, 7
    s_lshl_b32 s59, s53, 8
    s_add_u32 s59, s59, {WS_Q}
    s_or_b32 s52, s63, s3
    s_cmp_lg_u32 s52, 0
    s_cbranch_scc1 L_pdma
    s_lshl_b32 s52, {sH}, 8
    s_add_u32 s52, s52, {WS_CNT}
    v_mov_b32 v9, 0
    s_mov_b64 exec, 1
    buffer_store_dword v9, v9, {WSR}, s52 offen sc1
    s_mov_b64 exec, -1
    L_pdma:
    v_mul_lo_u32 v9, s57, v3
    v_lshl_add_u32 v9, v4, 4, v9
    s_lshl_b32 s52, s57, 3
    s_mul_i32 s52, s52, s3
    s_add_u32 s56, s56, s52
    s_lshl_b32 s57, s57, 5
    s_lshl_b32 s52, s3, 10
    s_add_u32 m0, s52, {L_STG}
    s_mov_b32 s52, 20
    L_mdma:
    buffer_load_dwordx4 v9, {AR}, s56 offen nt lds
    s_add_u32 m0, m0, 4096
    s_add_u32 s56, s56, s57
    s_sub_u32 s52, s52, 1
    s_cmp_lg_u32 s52, 0
    s_cbranch_scc1 L_mdma
    s_lshl_b32 s52, s3, 6
    s_add_u32 s59, s59, s52
    L_issued:
    s_barrier
    """)
    stamp(1, STAMPV_H)
    a(f"""
    v_mov_b32 v47, s58
    v_mov_b32 v46, 1
    s_cmp_lg_u32 {sISM}, 0
    s_cbranch_scc1 L_prod
    ds_write_b32 v47, v46 offset:{L_FL0}
    s_waitcnt lgkmcnt(0)
    """)
    tag_calc()
    a(f"""
    s_branch L_qp
    L_prod:
    s_waitcnt vmcnt(20)
    s_cmp_eq_u32 {sISM}, 2
    s_cbranch_scc1 L_ln
    """)
    silu_slice()
    a("s_branch L_pw\nL_ln:")
    for i in range(5):
        unpack2(24 + i, 32 + 2 * i, 33 + 2 * i)
    a("v_readfirstlane_b32 s52, v32")
    for i in range(10):
        a(f"v_subrev_f32 v{32+i}, s52, v{32+i}")
    a("v_add_f32 v42, v32, v33\nv_mul_f32 v43, v32, v32\nv_fmac_f32 v43, v33, v33")
    for i in range(2, 10):
        a(f"v_add_f32 v42, v42, v{32+i}\nv_fmac_f32 v43, v{32+i}, v{32+i}")
    reduce64([42, 43])
    a(f"""
    v_readlane_b32 s53, v42, 63
    v_readlane_b32 s54, v43, 63
    v_mov_b32 v44, 0x3acccccd             ; 1/640
    v_mul_f32 v42, s53, v44               ; S1/n
    v_mul_f32 v43, s54, v44               ; S2/n
    v_fma_f32 v43, -v42, v42, v43         ; var
    v_add_f32 v42, s52, v42               ; mean
    """)
    bf16_round2(42, 43)
    a("v_add_f32 v43, 0x3727c5ac, v43")
    bf16_round1(43)
    a("v_sqrt_f32 v43, v43")
    bf16_round1(43)
    a("v_rcp_f32 v44, v43")
    unpack2(30, 32, 33); unpack2(31, 34, 35)
    for k in range(4): a(f"v_sub_f32 v{32+k}, v{32+k}, v42")
    bf16_round2(32, 33); bf16_round2(34, 35)
    for k in range(4): div_rn(28 + k, 32 + k, 43, 44, 45)
    bf16_round2(28, 29); bf16_round2(30, 31)
    a(f"""
    L_pw:
    s_lshl_b32 s52, s3, 5
    v_add_u32 v14, s52, v7
    v_add_u32 v14, {L_STG}, v14
    v_add_u32 v15, 0x10000, v14
    v_lshlrev_b32 v12, 4, v5
    v_add_u32 v12, {L_XV}, v12
    v_lshlrev_b32 v13, 1, v10
    s_mov_b32 s54, {WS_MOD}
    s_waitcnt vmcnt(0) lgkmcnt(0)
    """)
    tag_calc()
    soft_barrier(3)
    stamp(2, STAMPV_H)
    stage_tr(64, 20, 14, 15)
    a(f"""
    s_cmp_eq_u32 {sISM}, 2
    s_cbranch_scc0 L_pg
    L_mp:
    """)
    spin_check()
    a(f"""
    buffer_load_dwordx4 v[16:19], v13, {WSR}, s54 offen sc1
    buffer_load_dwordx4 v[20:23], v13, {WSR}, s54 offen offset:2560 sc1
    s_waitcnt vmcnt(0)
    v_xor_b32 v24, {sTAG}, v18
    v_bitop3_b32 v24, v24, v22, {sTAG} bitop3:0xf6
    v_cmp_ne_u32 vcc, 0, v24
    s_cbranch_vccnz L_mp
    """)
    stamp(3, STAMPV_H)
    unpack2(21, 22, 23); unpack2(20, 24, 21)
    a("v_add_f32 v20, 1.0, v24")
    for k in range(1, 4): a(f"v_add_f32 v{20+k}, 1.0, v{20+k}")
    unpack2(16, 24, 25); unpack2(17, 26, 27)
    bf16_round2(20, 21); bf16_round2(22, 23)
    for k in (0, 2): a(f"v_pk_mul_f32 v[{20+k}:{21+k}], v[{28+k}:{29+k}], v[{20+k}:{21+k}]")
    bf16_round2(20, 21); bf16_round2(22, 23)
    for k in (0, 2): a(f"v_pk_add_f32 v[{20+k}:{21+k}], v[{20+k}:{21+k}], v[{24+k}:{25+k}]")
    a(f"""
    v_cvt_pk_bf16_f32 v20, v20, v21
    v_cvt_pk_bf16_f32 v21, v22, v23
    ds_write_b64 v10, v[20:21] offset:{L_XV}
    s_waitcnt lgkmcnt(0)
    """)
    soft_barrier(4)
    a("L_pg:")
    gemv(20, 16, 12)
    mod_publish("s59")
    a(f"v_mov_b32 v47, s58\nv_mov_b32 v46, 1\nds_write_b32 v47, v46 offset:{L_FL0}")
    stamp(4, STAMPV_H)
    a(f"""
    L_qp:
    s_cmp_lg_u32 s3, 0
    s_cbranch_scc1 L_mid
    v_min_u32 v15, 47, v0
    v_lshlrev_b32 v11, 3, v15
    v_lshlrev_b32 v15, 4, v15
    s_mul_i32 s56, {sH}, 768
    s_add_u32 s56, s56, {WS_Q}
    """)
    if 'noq' in XP:
        a(f"""
        s_lshl_b32 s52, {sH}, 8
        s_add_u32 s52, s52, {WS_CNT}
        v_mov_b32 v16, 0
        v_mov_b32 v17, 0
        s_mov_b64 exec, 1
        buffer_store_dword v16, v16, {WSR}, s52 offen sc1
        s_mov_b64 exec, -1
        """)
    else: ppoll("q", PQ, 1, SQ,
          lambda b: a(f"buffer_load_dwordx4 v[{144+4*b}:{147+4*b}], v15, {WSR}, s56 offen sc1"),
          lambda b: a(f"v_cmp_ne_u32 vcc, {sTAG}, v{146+4*b}"),
          lambda b: a(f"v_min_u32 v16, -2, v{144+4*b}\nv_min_u32 v17, -2, v{145+4*b}"))
    a(f"ds_write_b64 v11, v[16:17] offset:{L_QV}")
    stamp(5, STAMPV_H)

    sROLE, sG, sK5, sID, sSTR, sSOF, sNB = "s69", "s70", "s71", "s72", "s73", "s74", "s75"
    a(f"""
    L_mid:
    s_setprio 0
    s_waitcnt vmcnt(0)
    s_mov_b32 {sROLE}, 0
    s_mov_b32 s39, 0x20000
    s_cmp_ge_u32 {sS}, 6
    s_cbranch_scc1 L_rclr
    s_cmp_ge_u32 {sS}, 3
    s_cbranch_scc1 L_rs345
    s_lshl_b32 s53, {sS}, 1
    s_sub_u32 s52, {sH}, s53
    s_and_b32 s52, s52, 31
    s_cmp_eq_u32 {sS}, 2
    s_cselect_b32 s54, 20, 30
    s_sub_u32 {sID}, s52, s54
    s_add_u32 {sID}, {sID}, s53
    s_cmp_ge_u32 s52, s54
    s_cbranch_scc1 L_r5
    s_mul_i32 {sG}, s52, 205
    s_lshr_b32 {sG}, {sG}, 11
    s_mul_i32 s54, {sG}, 10
    s_sub_u32 {sK5}, s52, s54
    s_mul_i32 s54, {sS}, 3
    s_add_u32 {sG}, {sG}, s54
    s_branch L_r2
    L_rs345:
    s_cmp_eq_u32 {sS}, 5
    s_cbranch_scc1 L_rs5
    s_sub_u32 s53, {sS}, 3
    s_mul_i32 {sID}, s53, 24
    s_add_u32 {sID}, {sID}, {sH}
    s_cmp_lt_u32 {sH}, 24
    s_cbranch_scc1 L_r3
    s_lshl_b32 s53, s53, 3
    s_add_u32 {sID}, {sH}, s53
    s_sub_u32 {sID}, {sID}, 8
    s_branch L_r5
    L_rs5:
    s_sub_u32 {sID}, {sH}, 20
    s_cmp_lt_u32 {sID}, 10
    s_cbranch_scc1 L_r4
    s_add_u32 {sID}, {sH}, 2
    s_and_b32 {sID}, {sID}, 31
    s_cmp_lt_u32 {sID}, 8
    s_cbranch_scc0 L_mid_done
    s_add_u32 {sID}, {sID}, 32
    s_branch L_r5
    L_rclr:
    s_lshl_b32 s52, {sS}, 5
    s_add_u32 s52, s52, {sH}
    """)
    a(f"""
    s_cmp_lg_u32 s3, 1
    s_cbranch_scc1 L_mid_done
    v_mov_b32 v12, -1
    v_mov_b32 v13, -1
    v_mov_b32 v14, -1
    v_mov_b32 v15, -1
    v_lshlrev_b32 v10, 4, v0
    s_sub_u32 s53, s52, 192
    s_lshl_b32 s52, s53, 10
    s_add_u32 s52, s52, {WS_GU}
    s_branch L_clr1
    L_clr:
    buffer_store_dwordx4 v[12:15], v10, {WSR}, s52 offen sc1
    s_add_u32 s52, s52, 65536
    L_clr1:
    s_cmp_lt_u32 s52, {WS_AP + RAP*20480}
    s_cbranch_scc1 L_clr
    v_mov_b32 v11, {sTAG}
    v_mov_b32 v10, 0
    s_lshl_b32 s52, s53, 2
    s_add_u32 s52, s52, {WS_CLR}
    s_waitcnt vmcnt(0)
    s_mov_b64 exec, 1
    buffer_store_dword v11, v10, {WSR}, s52 offen sc1
    s_mov_b64 exec, -1
    s_branch L_mid_done
    L_r2:
    s_mov_b32 {sROLE}, 2
    s_mov_b32 s36, s{sWO}
    s_mov_b32 s37, s{sWO+1}
    s_mov_b32 s38, {6144*1280}
    s_mov_b32 {sSTR}, 1280
    s_mul_i32 {sSOF}, {sG}, {768*1280}
    s_lshl_b32 s52, {sK5}, 7
    s_add_u32 {sSOF}, {sSOF}, s52
    s_mov_b32 {sNB}, 24
    s_branch L_stage
    L_r3:
    s_mov_b32 {sROLE}, 3
    s_cmp_ge_u32 {sID}, 24
    s_cselect_b32 s36, s{sUP}, s{sGATE}
    s_cselect_b32 s37, s{sUP+1}, s{sGATE+1}
    s_cselect_b32 s52, 24, 0
    s_mov_b32 s38, {640*3072}
    s_mov_b32 {sSTR}, 3072
    s_sub_u32 s52, {sID}, s52
    s_lshl_b32 {sSOF}, s52, 7
    s_mov_b32 {sNB}, 20
    s_branch L_stage
    L_r4:
    s_mov_b32 {sROLE}, 4
    s_mov_b32 s36, s{sDOWN}
    s_mov_b32 s37, s{sDOWN+1}
    s_mov_b32 s38, {1536*1280}
    s_mov_b32 {sSTR}, 1280
    s_lshl_b32 {sSOF}, {sID}, 7
    s_mov_b32 {sNB}, 24
    s_branch L_stage
    L_r5:
    s_mov_b32 {sROLE}, 5
    s_mov_b32 s36, s{sWM}
    s_mov_b32 s37, s{sWM+1}
    s_mov_b32 s38, {640*7680}
    s_mov_b32 {sSTR}, 7680
    s_lshl_b32 {sSOF}, {sID}, 7
    s_add_u32 {sSOF}, {sSOF}, 2560
    s_mov_b32 {sNB}, 20
    """)
    srd(44, sC, 1280)
    a(f"""
    s_mul_i32 s52, s3, 320
    v_lshlrev_b32 v10, 3, v0
    buffer_load_dwordx2 v[12:13], v10, {CR}, s52 offen
    v_add_u32 v10, s52, v10
    s_waitcnt vmcnt(0)
    """)
    silu_slice()
    a(f"""
    L_stage:
    v_mul_lo_u32 v9, {sSTR}, v3
    v_lshl_add_u32 v9, v4, 4, v9
    s_lshl_b32 s53, {sSTR}, 3
    s_mul_i32 s52, s53, s3
    s_add_u32 {sSOF}, {sSOF}, s52
    s_lshl_b32 s53, {sSTR}, 5
    s_lshl_b32 s54, s3, 5
    v_add_u32 v10, s54, v7
    v_add_u32 v10, {L_STG}, v10
    v_add_u32 v11, 0x10000, v10
    """)
    if NL:
        a(f"v_mov_b32 v1, {L_FREE}\nL_freew:")
        spin_check()
        a("""
        s_sleep 4
        ds_read_b128 v[16:19], v1
        s_waitcnt lgkmcnt(0)
        v_and_b32 v16, v16, v17
        v_and_b32 v18, v18, v19
        v_and_b32 v16, v16, v18
        v_cmp_eq_u32 vcc, 0, v16
        s_cbranch_vccnz L_freew
        """)

    def stage_dma():
        lab = a.lab("L_dma")
        a(f"""
        s_lshl_b32 s52, s3, 10
        s_add_u32 m0, s52, {L_STG}
        s_mov_b32 s55, {sNB}
        {lab}:
        buffer_load_dwordx4 v9, {AR}, {sSOF} offen nt lds
        s_add_u32 m0, m0, 4096
        s_add_u32 {sSOF}, {sSOF}, s53
        s_sub_u32 s55, s55, 1
        s_cmp_lg_u32 s55, 0
        s_cbranch_scc1 {lab}
        s_waitcnt vmcnt(0) lgkmcnt(0)
        """)

    stage_dma()
    soft_barrier(0)
    stage_tr(64, 24, 10, 11)
    a(f"s_cmp_lg_u32 {sROLE}, 4\ns_cbranch_scc1 L_staged")
    soft_barrier(1)
    stage_dma()
    soft_barrier(2)
    stage_tr(160, 24, 10, 11)
    a(f"""
    L_staged:
    v_lshlrev_b32 v12, 4, v5
    v_add_u32 v12, {L_XV}, v12
    s_cmp_lg_u32 {sROLE}, 5
    s_cbranch_scc1 L_not5
    """)
    gemv(20, 16, 12)
    a(f"""
    s_lshl_b32 s52, {sID}, 8
    s_lshl_b32 s53, s3, 6
    s_add_u32 s52, s52, s53
    s_add_u32 s52, s52, {WS_MB}
    """)
    mod_publish("s52")
    a(f"""
    s_branch L_mid_done
    L_not5:
    """)
    a(f"""
    v_lshlrev_b32 v10, 2, v0
    s_mov_b32 s52, {WS_CLR}
    L_clrwait:
    """)
    spin_check()
    a(f"""
    s_sleep 8
    buffer_load_dword v13, v10, {WSR}, s52 offen sc1
    s_waitcnt vmcnt(0)
    v_cmp_ne_u32 vcc, {sTAG}, v13
    s_cbranch_vccnz L_clrwait
    s_cmp_eq_u32 {sROLE}, 2
    s_cbranch_scc1 L_mid_done
    """)
    srd(40, sX, 1280)
    a(f"""
    s_cmp_eq_u32 {sROLE}, 4
    s_cbranch_scc1 L_m4
    s_mul_i32 s52, s3, 640
    v_min_u32 v13, 39, v0
    v_lshlrev_b32 v13, 4, v13
    v_add_u32 v13, s52, v13               ; (160 w + 4p) * 4
    s_mov_b32 s53, {WS_MB + 2560}
    s_mov_b32 s54, {WS_MB + 5120}
    s_branch L_m34
    L_m4:
    s_lshl_b32 s52, {sID}, 8
    s_lshl_b32 s53, s3, 6
    s_add_u32 s52, s52, s53
    v_lshlrev_b32 v13, 4, v5
    v_add_u32 v13, s52, v13               ; (64 id + 16 w + 4 g) * 4
    s_mov_b32 s53, {WS_MB + 7680}
    s_mov_b32 s54, {WS_MB + 7680}
    L_m34:
    v_lshrrev_b32 v14, 1, v13
    s_mov_b32 s52, {WS_MB}
    buffer_load_dwordx2 v[28:29], v14, {BR}, 0 offen
    L_mbpoll:
    """)
    spin_check()
    a(f"""
    s_sleep 8
    buffer_load_dwordx4 v[16:19], v13, {WSR}, s52 offen sc1
    buffer_load_dwordx4 v[20:23], v13, {WSR}, s53 offen sc1
    buffer_load_dwordx4 v[24:27], v13, {WSR}, s54 offen sc1
    v_mov_b32 v15, 0
    s_waitcnt vmcnt(0)
    v_bitop3_b32 v15, v15, v18, {sTAG} bitop3:0xf6
    v_bitop3_b32 v15, v15, v22, {sTAG} bitop3:0xf6
    v_bitop3_b32 v15, v15, v26, {sTAG} bitop3:0xf6
    v_cmp_ne_u32 vcc, 0, v15
    s_cbranch_vccnz L_mbpoll
    """)
    unpack2(28, 44, 45); unpack2(29, 46, 47)
    unpack2(16, 48, 49); unpack2(17, 50, 51)
    unpack2(20, 52, 53); unpack2(21, 54, 55)
    unpack2(24, 56, 57); unpack2(25, 58, 59)
    for i in range(4): a(f"v_add_f32 v{56+i}, 1.0, v{56+i}")
    bf16_round2(56, 57); bf16_round2(58, 59)
    a("L_mid_done:")
    stamp(6, STAMPV_H)

    if DRY:
        a("""
        s_mov_b64 s[4:5], 0
        s_mov_b64 s[6:7], 0
        s_mov_b64 s[8:9], 0
        s_mov_b64 s[10:11], 0
        s_mov_b64 s[12:13], 0
        s_mov_b32 s14, 1
        s_mov_b64 exec, 0
        s_branch L_b5
        """)
    a("""
    L_dry_done:
    s_setprio 0
    s_mov_b64 exec, -1
    s_mov_b64 s[4:5], -1
    s_mov_b32 s6, 0x00010001
    s_mov_b32 s7, 0x00010001
    s_mov_b32 s8, -1
    s_mov_b32 s9, 0xff
    s_mov_b32 s10, 0
    s_mov_b32 s11, 0x80000000
    s_mov_b64 s[12:13], 1
    s_mov_b32 s14, 0
    """)
    sKN, sEST, sN, sR = "s76", "s77", "s78", "s79"
    a(f"""
    s_cmp_lg_u32 s3, 0
    s_cbranch_scc1 L_b5
    s_lshl_b32 s52, {sH}, 8
    s_add_u32 s52, s52, {WS_CNT}
    s_add_u32 s60, s{sWS}, s52
    s_addc_u32 s61, s{sWS+1}, 0
    s_mov_b32 {sKN}, {L_RB + 4*NSTAT}
    s_mov_b32 {sEST}, -1
    s_mov_b32 s63, {4*LA}
    v_mov_b32 v10, 0
    L_grab:
    """)
    spin_check()
    a(f"""
    s_sleep {GSL}
    ds_read_b128 v[16:19], v10 offset:{L_PROG}
    s_waitcnt lgkmcnt(0)
    v_{"min" if MINT else "max"}3_u32 v16, v16, v17, v18
    v_{"min" if MINT else "max"}_u32 v16, v16, v19
    v_readfirstlane_b32 s52, v16
    s_add_u32 s52, s52, s63
    s_cmp_lt_u32 s52, {sKN}
    s_cbranch_scc1 L_grab
    s_cmp_lg_u32 {sEST}, -1
    s_cbranch_scc1 L_grab1
    s_load_dword {sEST}, s[60:61], 0 glc
    s_waitcnt lgkmcnt(0)
    L_grab1:
    s_min_u32 s52, {sEST}, {PR}
    s_sub_u32 s52, {PR}, s52
    s_lshr_b32 s52, s52, {SH}
    s_max_u32 {sN}, s52, {NMIN}
    s_mov_b32 {sR}, {sN}
    s_atomic_add {sR}, s[60:61], 0 glc
    s_waitcnt lgkmcnt(0)
    s_min_u32 s53, {sR}, {PR}
    s_sub_u32 s52, {PR}, s53
    s_min_u32 s52, s52, {sN}
    s_mul_i32 s54, {sH}, {GPH}
    s_add_u32 s54, s54, s53
    s_lshl_b32 s54, s54, 2
    s_add_u32 s54, s54, {32*NSTAT}
    v_lshlrev_b32 v16, 2, v0
    v_add_u32 v17, s54, v16
    v_and_b32 v17, 2047, v17
    v_add_u32 v16, {sKN}, v16
    s_add_u32 s55, s53, {sN}
    s_cmp_ge_u32 s55, {PR}
    s_cselect_b32 s56, 1, 0
    v_mov_b32 v18, {END}
    v_cmp_gt_u32 vcc, s52, v0
    v_cndmask_b32 v17, v18, v17, vcc
    s_add_u32 s57, s52, s56
    v_cmp_gt_u32 vcc, s57, v0
    s_and_saveexec_b64 s[58:59], vcc
    ds_write_b32 v16, v17
    s_mov_b64 exec, -1
    s_lshl_b32 s52, s52, 2
    s_add_u32 {sKN}, {sKN}, s52
    s_mul_i32 s52, {sN}, {EM}
    s_add_u32 {sEST}, {sR}, s52
    s_cmp_ge_u32 {sEST}, {PR - JIT if JIT else 1 << 30}
    s_cselect_b32 s63, -4, s63
    s_cmp_eq_u32 s56, 0
    s_cbranch_scc1 L_grab
    s_waitcnt lgkmcnt(0)
    L_b5:
    s_setprio 3
    """)
    stamp(7, STAMPV_H)
    a("s_cmp_lg_u32 s14, 0\ns_cbranch_scc1 L_nb1\ns_barrier\nL_nb1:")
    stamp(8, STAMPV_H)
    a(f"""
    s_cmp_lg_u32 s3, 0
    s_cbranch_scc1 L_t1_done
    v_lshlrev_b32 v10, 2, v0
    v_add_u32 v10, {L_PART}, v10
    v_mov_b32 v11, {L_ML}
    ds_read_b128 v[16:19], v11
    ds_read_b128 v[20:23], v11 offset:16
    """)
    T1R = [24 + i for i in range(20)] + [14, 15, 60, 61]
    for p in range(12):
        a(f"ds_read2st64_b32 v[{T1R[2*p]}:{T1R[2*p+1]}], v10 offset0:{2*p} offset1:{2*p+1}")
    a(f"""
    s_lshl_b32 s52, s2, 10
    s_add_u32 s52, s52, {WS_PO}
    s_lshl_b32 s53, s2, 4
    s_add_u32 s53, s53, {WS_PML}
    v_lshlrev_b32 v11, 4, v0
    s_waitcnt lgkmcnt(12)
    v_min3_f32 v8, v16, v18, v20
    v_min_f32 v8, v8, v22                 ; NMmin
    v_sub_f32 v16, v8, v16
    v_sub_f32 v18, v8, v18
    v_sub_f32 v20, v8, v20
    v_sub_f32 v22, v8, v22
    v_exp_f32 v16, v16
    v_exp_f32 v18, v18
    v_exp_f32 v20, v20
    v_exp_f32 v22, v22
    v_mul_f32 v9, v16, v17
    v_fmac_f32 v9, v18, v19
    v_fmac_f32 v9, v20, v21
    v_fmac_f32 v9, v22, v23               ; l
    s_waitcnt lgkmcnt(0)
    """)
    idx = lambda w, hi, t: T1R[6 * w + 3 * hi + t]
    for w in range(4):
        for t in range(3):
            a(f"v_add_f32 v{idx(w,0,t)}, v{idx(w,0,t)}, v{idx(w,1,t)}")
    for t in range(3):
        a(f"v_mul_f32 v{17+2*t}, v16, v{idx(0,0,t)}")
    for w in range(1, 4):
        for t in range(3):
            a(f"v_fmac_f32 v{17+2*t}, v{16+2*w}, v{idx(w,0,t)}")
    a(f"""
    v_mov_b32 v24, v17
    v_mov_b32 v25, v19
    v_mov_b32 v26, v21
    v_mov_b32 v27, {sTAG}
    v_mov_b32 v28, v8
    v_mov_b32 v29, v9
    v_mov_b32 v30, {sTAG}
    v_mov_b32 v31, {sTAG}
    buffer_store_dwordx4 v[24:27], v11, {WSR}, s52 offen sc1
    s_mov_b64 exec, s[12:13]
    buffer_store_dwordx4 v[28:31], v11, {WSR}, s53 offen sc1
    s_mov_b64 exec, s[4:5]
    L_t1_done:
    """)
    stamp(9, STAMPV_H)
    a(f"""
    s_cmp_eq_u32 {sROLE}, 3
    s_cbranch_scc1 L_t3
    s_cmp_eq_u32 {sROLE}, 4
    s_cbranch_scc1 L_t4
    s_cmp_eq_u32 {sROLE}, 2
    s_cbranch_scc0 L_hend
    """)
    a(f"""
    s_lshl_b32 s52, {sG}, 2
    s_add_u32 s52, s52, s3
    s_lshl_b32 s53, s52, 13
    s_add_u32 s53, s53, {WS_PO}
    s_lshl_b32 s54, s52, 7
    s_add_u32 s54, s54, {WS_PML}
    v_lshlrev_b32 v10, 4, v0
    v_lshlrev_b32 v11, 4, v4
    s_add_u32 s55, s53, 4096
    L_t2gate:
    """)
    spin_check()
    a(f"""
    buffer_load_dwordx4 v[48:51], v11, {WSR}, s54 offen sc1
    s_waitcnt vmcnt(0)
    v_cmp_ne_u32 s[78:79], {sTAG}, v50
    s_and_b32 s56, s78, 0xff
    s_bcnt1_i32_b32 s56, s56
    s_cmp_gt_u32 s56, {T2G}
    s_cbranch_scc1 L_t2gate
    """)
    for i in range(8): a(f"s_mov_b64 s[{80+2*i}:{81+2*i}], s[4:5]")
    a("L_t2poll:")
    stamp(14, STAMPV_H)
    spin_check()
    for i in range(8):
        lz = a.lab("L_z")
        a(f"s_mov_b64 exec, s[{80+2*i}:{81+2*i}]")
        if SKIPZ: a(f"s_cbranch_execz {lz}")
        a(f"buffer_load_dwordx4 v[{16+4*i}:{19+4*i}], v10, {WSR}, {'s53' if i < 4 else 's55'} offen offset:{1024*(i%4)} sc1")
        a(f"{lz}:")
    a(f"""
    s_mov_b64 exec, s[78:79]
    buffer_load_dwordx4 v[48:51], v11, {WSR}, s54 offen sc1
    s_mov_b64 exec, s[4:5]
    s_waitcnt vmcnt(0)
    v_cmp_ne_u32 s[78:79], {sTAG}, v50
    """)
    for i in range(8): a(f"v_cmp_ne_u32 s[{80+2*i}:{81+2*i}], {sTAG}, v{19+4*i}")
    a("s_or_b64 s[56:57], s[78:79], s[80:81]")
    for i in range(1, 8): a(f"s_or_b64 s[56:57], s[56:57], s[{80+2*i}:{81+2*i}]")
    a("s_cbranch_scc1 L_t2poll")
    stamp(10, STAMPV_H)
    a(f"""
    v_min_f32_dpp v52, v48, v48 row_ror:4 row_mask:0xf bank_mask:0xf
    v_min_f32_dpp v52, v52, v52 row_ror:2 row_mask:0xf bank_mask:0xf
    v_min_f32_dpp v52, v52, v52 row_ror:1 row_mask:0xf bank_mask:0xf
    v_sub_f32 v52, v52, v48
    v_exp_f32 v52, v52
    v_mul_f32 v53, v52, v49
    v_add_f32_dpp v53, v53, v53 row_ror:4 row_mask:0xf bank_mask:0xf
    v_add_f32_dpp v53, v53, v53 row_ror:2 row_mask:0xf bank_mask:0xf
    v_add_f32_dpp v53, v53, v53 row_ror:1 row_mask:0xf bank_mask:0xf
    v_rcp_f32 v53, v53
    v_mul_f32 v52, v52, v53
    """)
    for i in range(8): a(f"v_readlane_b32 s{80+i}, v52, {i}")
    a("s_mul_i32 s52, s3, 384\nv_lshl_add_u32 v11, v0, 1, s52")
    for t in range(3): a(f"v_mul_f32 v{54+t}, s80, v{16+t}")
    for i in range(1, 8):
        for t in range(3): a(f"v_fmac_f32 v{54+t}, s{80+i}, v{16+4*i+t}")
    a(f"""
    v_cvt_pk_bf16_f32 v54, v54, v55
    v_cvt_pk_bf16_f32 v56, v56, v56
    ds_write_b16 v11, v54 offset:{L_XV}
    ds_write_b16_d16_hi v11, v54 offset:{L_XV+128}
    ds_write_b16 v11, v56 offset:{L_XV+256}
    s_mul_i32 s52, {sG}, 2560
    s_lshl_b32 s53, {sK5}, 8
    s_add_u32 s52, s52, s53
    s_lshl_b32 s53, s3, 6
    s_add_u32 s52, s52, s53
    s_add_u32 s52, s52, {WS_AP}
    v_lshlrev_b32 v10, 4, v5
    s_waitcnt lgkmcnt(0)
    s_cmp_lg_u32 s14, 0
    s_cbranch_scc1 L_nb2
    s_barrier
    L_nb2:
    """)
    gemv(24, 16, 12)
    for i in range(4): a(f"v_min_u32 v{16+i}, -2, v{16+i}")
    a(f"""
    s_mov_b64 exec, s[6:7]
    buffer_store_dwordx4 v[16:19], v10, {WSR}, s52 offen sc1
    """)
    for r in range(1, RAP):
        a(f"s_add_u32 s52, s52, 20480\nbuffer_store_dwordx4 v[16:19], v10, {WSR}, s52 offen sc1")
    stamp(11, STAMPV_H)
    a("s_branch L_hend")

    def ap_poll(tag):
        rr = lambda i: 16 + 4 * i if i < 7 else 8
        a(f"s_sub_u32 s56, {sS}, 3\ns_min_u32 s56, s56, {RAP-1}\ns_mul_i32 s56, s56, 20480")
        for i in range(4): a(f"s_add_u32 s{52+i}, s56, {WS_AP + 5120*i}")
        for i in range(8): a(f"s_mov_b64 s[{80+2*i}:{81+2*i}], s[4:5]")
        if GATE3 == 1 and tag == 3:
            a(f"""
            s_lshl_b32 s56, s3, 10
            s_add_u32 s56, s56, {WS_PML}
            v_lshlrev_b32 v14, 4, v0
            L_gate3:
            """)
            spin_check()
            a(f"""
            s_sleep 4
            buffer_load_dword v15, v14, {WSR}, s56 offen offset:8 sc1
            s_waitcnt vmcnt(0)
            v_cmp_ne_u32 vcc, {sTAG}, v15
            s_cbranch_vccnz L_gate3
            """)
        if GATE3 == 2:
            a(f"""
            s_and_b32 s56, {sID}, 3
            s_mul_i32 s56, s56, 2560
            s_add_u32 s56, s56, s52
            s_add_u32 s57, s56, 10240
            L_gate{tag}:
            """)
            spin_check()
            a(f"""
            s_sleep 4
            buffer_load_dword v14, v13, {WSR}, s56 offen sc1
            buffer_load_dword v15, v13, {WSR}, s57 offen sc1
            s_waitcnt vmcnt(0)
            v_cmp_eq_u32 s[58:59], -1, v14
            v_cmp_eq_u32 vcc, -1, v15
            s_cmp_eq_u64 s[58:59], 0
            s_cbranch_scc1 L_ap{tag}
            s_cbranch_vccnz L_gate{tag}
            """)
        a(f"L_ap{tag}:")
        stamp(14, STAMPV_H)
        spin_check()
        for i in range(8):
            lz = a.lab("L_z")
            a(f"s_mov_b64 exec, s[{80+2*i}:{81+2*i}]")
            if SKIPZ: a(f"s_cbranch_execz {lz}")
            a(f"buffer_load_dwordx4 v[{rr(i)}:{rr(i)+3}], v13, {WSR}, s{52+i//2} offen offset:{2560*(i%2)} sc1")
            a(f"{lz}:")
        a("s_mov_b64 exec, s[4:5]\ns_waitcnt vmcnt(0)")
        for i in range(8): a(f"v_cmp_eq_u32 s[{80+2*i}:{81+2*i}], -1, v{rr(i)}")
        a("s_or_b64 s[56:57], s[80:81], s[82:83]")
        for i in range(2, 8): a(f"s_or_b64 s[56:57], s[56:57], s[{80+2*i}:{81+2*i}]")
        a(f"s_cbranch_scc1 L_ap{tag}")
        stamp(15, STAMPV_H)
        for (x, y) in ((0, 1), (2, 3), (4, 5), (6, 7), (0, 2), (4, 6), (0, 4)):
            for k in (0, 2): a(f"v_pk_add_f32 v[{rr(x)+k}:{rr(x)+k+1}], v[{rr(x)+k}:{rr(x)+k+1}], v[{rr(y)+k}:{rr(y)+k+1}]")
        bf16_round2(16, 17); bf16_round2(18, 19)
        for k in (0, 2): a(f"v_pk_mul_f32 v[{16+k}:{17+k}], v[{48+k}:{49+k}], v[{16+k}:{17+k}]")
        bf16_round2(16, 17); bf16_round2(18, 19)
        for k in (0, 2): a(f"v_pk_add_f32 v[{16+k}:{17+k}], v[{44+k}:{45+k}], v[{16+k}:{17+k}]")
        bf16_round2(16, 17); bf16_round2(18, 19)

    a("L_t3:")
    ap_poll(3)
    stamp(10, STAMPV_H)
    a(f"""
    v_readfirstlane_b32 s58, v16
    v_cmp_gt_u32 vcc, 40, v0
    v_mov_b32 v26, 0
    """)
    for k in range(4):
        a(f"v_subrev_f32 v{20+k}, s58, v{16+k}")
    a("""
    v_add_f32 v24, v20, v21
    v_mul_f32 v25, v20, v20
    v_add_f32 v24, v24, v22
    v_fmac_f32 v25, v21, v21
    v_add_f32 v24, v24, v23
    v_fmac_f32 v25, v22, v22
    v_fmac_f32 v25, v23, v23
    v_cndmask_b32 v24, v26, v24, vcc
    v_cndmask_b32 v25, v26, v25, vcc
    """)
    reduce64([24, 25])
    a(f"""
    v_mul_f32 v26, 0x3bcccccd, v24        ; S1/160
    v_fma_f32 v25, -v26, v24, v25         ; M2 = S2 - S1^2/160
    v_add_f32 v24, s58, v26               ; wave mean
    s_lshl_b32 s52, s3, 3
    v_mov_b32 v27, s52
    s_mov_b64 exec, s[10:11]
    ds_write_b64 v27, v[24:25] offset:{L_STAT}
    s_mov_b64 exec, s[4:5]
    v_mov_b32 v27, {L_STAT}
    s_waitcnt lgkmcnt(0)
    s_cmp_lg_u32 s14, 0
    s_cbranch_scc1 L_nb3
    s_barrier
    L_nb3:
    ds_read_b128 v[28:31], v27
    ds_read_b128 v[32:35], v27 offset:16
    v_lshrrev_b32 v14, 1, v13
    s_waitcnt lgkmcnt(0)
    v_add_f32 v24, v28, v30
    v_add_f32 v25, v32, v34
    v_add_f32 v24, v24, v25
    v_mul_f32 v24, 0.25, v24              ; mean
    v_add_f32 v25, v29, v31
    v_add_f32 v26, v33, v35
    v_add_f32 v25, v25, v26               ; sum M2
    v_sub_f32 v28, v28, v24
    v_sub_f32 v30, v30, v24
    v_sub_f32 v32, v32, v24
    v_sub_f32 v34, v34, v24
    v_mul_f32 v26, v28, v28
    v_fmac_f32 v26, v30, v30
    v_fmac_f32 v26, v32, v32
    v_fmac_f32 v26, v34, v34
    v_mul_f32 v25, 0x3acccccd, v25        ; /640
    v_fmac_f32 v25, 0.25, v26             ; + 160/640 * sum (mean_w - mean)^2
    """.replace("0.25,", "0x3e800000,"))
    bf16_round2(24, 25)
    a("v_add_f32 v25, 0x3727c5ac, v25")
    bf16_round1(25)
    a("v_sqrt_f32 v25, v25")
    bf16_round1(25)
    a("v_rcp_f32 v26, v25")
    for k in range(4): a(f"v_sub_f32 v{16+k}, v{16+k}, v24")
    bf16_round2(16, 17); bf16_round2(18, 19)
    for k in range(4): div_rn(20 + k, 16 + k, 25, 26, 28 + k)
    bf16_round2(20, 21); bf16_round2(22, 23)
    for k in range(4): a(f"v_mul_f32 v{20+k}, v{20+k}, v{56+k}")
    bf16_round2(20, 21); bf16_round2(22, 23)
    for k in range(4): a(f"v_add_f32 v{20+k}, v{20+k}, v{52+k}")
    a(f"""
    v_cvt_pk_bf16_f32 v20, v20, v21
    v_cvt_pk_bf16_f32 v21, v22, v23
    s_mov_b64 exec, s[8:9]
    ds_write_b64 v14, v[20:21] offset:{L_XV}
    s_mov_b64 exec, s[4:5]
    s_lshl_b32 s52, {sID}, 7
    s_lshl_b32 s53, s3, 5
    s_add_u32 s52, s52, s53
    s_add_u32 s52, s52, {WS_GU}
    v_lshlrev_b32 v10, 3, v5
    v_and_b32 v8, 3, v0
    v_cmp_eq_u32 s[58:59], 1, v8
    v_cmp_eq_u32 s[60:61], 2, v8
    v_cmp_eq_u32 s[62:63], 3, v8
    s_waitcnt lgkmcnt(0)
    s_cmp_lg_u32 s14, 0
    s_cbranch_scc1 L_nb4
    s_barrier
    L_nb4:
    """)
    gemv(20, 16, 12)
    a(f"""
    s_cmp_ge_u32 {sID}, 24
    s_cbranch_scc1 L_t3up
    v_cndmask_b32 v16, v16, v17, s[58:59]
    v_cndmask_b32 v16, v16, v18, s[60:61]
    v_cndmask_b32 v16, v16, v19, s[62:63]
    """)
    bf16_round1(16)
    import struct
    f2u = lambda x: struct.unpack('<I', struct.pack('<f', x))[0]
    c1 = -2.0 * 0.7978845608028654 * 1.4426950408889634
    a(f"""
    v_mul_f32 v17, v16, v16
    v_mov_b32 v18, 0x{f2u(c1):08x}
    v_fmac_f32 v18, 0x{f2u(c1*0.044715):08x}, v17
    v_mul_f32 v17, v16, v18
    v_exp_f32 v17, v17
    v_add_f32 v17, 1.0, v17
    v_rcp_f32 v17, v17
    v_mul_f32 v16, v16, v17
    v_mov_b32_dpp v17, v16 quad_perm:[1,1,1,1] row_mask:0xf bank_mask:0xf
    v_mov_b32_dpp v18, v16 quad_perm:[2,2,2,2] row_mask:0xf bank_mask:0xf
    v_mov_b32_dpp v19, v16 quad_perm:[3,3,3,3] row_mask:0xf bank_mask:0xf
    L_t3up:
    v_cvt_pk_bf16_f32 v16, v16, v17
    v_cvt_pk_bf16_f32 v17, v18, v19
    v_min_u32 v16, -2, v16
    v_min_u32 v17, -2, v17
    s_mov_b64 exec, s[6:7]
    buffer_store_dwordx2 v[16:17], v10, {WSR}, s52 offen sc1
    """)
    stamp(11, STAMPV_H)
    a("s_branch L_hend")
    a("L_t4:")
    ap_poll(4)
    stamp(10, STAMPV_H)
    for k in range(4): a(f"v_mov_b32 v{44+k}, v{16+k}")
    srd(44, sOUT, 1280)
    a(f"""
    s_lshl_b32 s52, s3, 10
    v_lshl_add_u32 v10, v0, 4, s52
    s_mov_b32 s53, {WS_GU}
    s_mov_b32 s54, {WS_GU + 3072}
    v_lshrrev_b32 v14, 1, v13
    s_cmp_eq_u32 s3, 3
    s_cbranch_scc1 L_t4b
    L_gupoll:
    """)
    stamp(16, STAMPV_H)
    spin_check()
    a(f"""
    buffer_load_dwordx4 v[16:19], v10, {WSR}, s53 offen sc1
    buffer_load_dwordx4 v[20:23], v10, {WSR}, s54 offen sc1
    s_waitcnt vmcnt(0)
    v_max3_u32 v24, v16, v18, v20
    v_max_u32 v24, v24, v22
    v_cmp_eq_u32 vcc, -1, v24
    s_cbranch_vccnz L_gupoll
    """)
    stamp(11, STAMPV_H)
    for k in range(4):
        unpack2(16 + k, 24, 25); unpack2(20 + k, 26, 27)
        a(f"v_mul_f32 v24, v24, v26\nv_mul_f32 v25, v25, v27\nv_cvt_pk_bf16_f32 v{16+k}, v24, v25")
    a(f"""
    ds_write_b128 v10, v[16:19] offset:{L_XV}
    s_waitcnt lgkmcnt(0)
    L_t4b:
    s_cmp_lg_u32 s14, 0
    s_cbranch_scc1 L_nb5
    s_barrier
    L_nb5:
    """)
    gemv(48, 16, 12, tmp=20, ntmp=6)
    bf16_round2(16, 17); bf16_round2(18, 19)
    for k in range(4): a(f"v_mul_f32 v{16+k}, v{52+k}, v{16+k}")
    bf16_round2(16, 17); bf16_round2(18, 19)
    for k in range(4): a(f"v_add_f32 v{16+k}, v{44+k}, v{16+k}")
    a(f"""
    v_cvt_pk_bf16_f32 v16, v16, v17
    v_cvt_pk_bf16_f32 v17, v18, v19
    s_mov_b64 exec, s[6:7]
    buffer_store_dwordx2 v[16:17], v14, {CR}, 0 offen
    """)
    dbgstamp(4)
    a(f"""
    s_or_b32 s52, {sID}, s3
    s_cmp_lg_u32 s52, 0
    s_cbranch_scc1 L_hend
    s_add_u32 s52, {sE}, 1
    v_mov_b32 v18, s52
    v_mov_b32 v19, 0
    s_mov_b64 exec, s[12:13]
    buffer_store_dword v18, v19, {WSR}, 0 offen
    L_hend:
    """)
    a("s_cmp_lg_u32 s14, 0\ns_cbranch_scc1 L_dry_done")
    stamp(12, STAMPV_H)
    stamp_dump(STAMPV_H)
    a("s_endpgm")

    RING = 56
    D0, D1, ACC, Q = 20, 24, 28, 40
    sW, sOFF, sIDX, sEND, sV_ = "s52", "s53", "s54", "s55", "s56"
    a("L_stream:")
    if prof: a(f"v_mov_b32 v{STAMPV_S}, 0\nv_mov_b32 v53, 0\nv_mov_b32 v54, 0\ns_mov_b32 s63, 0")
    stamp(0, STAMPV_S)
    a(f"""
    s_sub_u32 {sW}, s3, 4
    v_bfe_u32 v1, v0, 1, 3
    v_mul_u32_u24 v1, 384, v1
    v_and_b32 v2, 1, v0
    v_lshl_add_u32 v1, v2, 6, v1
    v_lshrrev_b32 v12, 4, v0
    v_lshl_add_u32 v1, v12, 4, v1
    v_add_u32 v2, 3072, v1
    v_lshrrev_b32 v3, 3, v0
    v_mul_u32_u24 v3, 384, v3
    v_and_b32 v13, 7, v0
    v_lshl_add_u32 v3, v13, 4, v3
    v_add_u32 v4, 3072, v3
    s_mul_i32 s57, {sH}, {HEADBYTES}
    s_mul_hi_u32 s58, {sH}, {HEADBYTES}
    s_mul_i32 s64, {sH}, {GPH}
    s_add_u32 s64, s64, {sS}
    s_lshl_b32 s64, s64, 2
    s_add_u32 s64, s64, {sW}
    s_and_b32 s64, s64, 2047
    s_mul_i32 {sOFF}, s64, 6144
    s_mov_b32 s38, {HEADBYTES}
    s_mov_b32 s39, 0x20000
    s_mov_b32 s42, {HEADBYTES}
    s_mov_b32 s43, 0x20000
    s_waitcnt lgkmcnt(0)
    s_add_u32 s36, s{sK}, s57
    s_addc_u32 s37, s{sK+1}, s58
    s_add_u32 s40, s{sV}, s57
    s_addc_u32 s41, s{sV+1}, s58
    """)
    if dbgt:
        a("s_cmp_lg_u32 s3, 4\ns_cbranch_scc1 L_nd0")
        dbgstamp(0, True); dbgstamp(1)
        a("L_nd0:")
    if EARLY: a("s_cmp_eq_u32 s62, 0\ns_cbranch_scc1 L_nob0\ns_barrier\nL_nob0:")
    else: a("s_barrier")

    def kloads(slot):
        r0 = RING + 48 * slot
        for j in range(6):
            a(f"buffer_load_dwordx4 v[{r0+4*j}:{r0+4*j+3}], v{1+j//3}, {AR}, {sOFF} offen offset:{128*(j%3)} nt")

    def vloads(slot):
        r0 = RING + 48 * slot + 24
        for j in range(6):
            a(f"buffer_load_dwordx4 v[{r0+4*j}:{r0+4*j+3}], v{3+j//3}, {BR}, {sOFF} offen offset:{128*(j%3)} nt")
    grp = 0
    def pace():
        nonlocal grp
        if 0 < grp <= SLOW: a("s_waitcnt vmcnt(0)")
        elif 6 * grp > PACE: a(f"s_waitcnt vmcnt({PACE})")
        grp += 1
    if DLY: a(f"s_sleep {DLY}")
    def flag_wait(tag):
        a(f"v_mov_b32 v17, {L_FL0}\nL_fw{tag}:")
        spin_check()
        a(f"""
        s_sleep 1
        ds_read_b128 v[20:23], v17
        s_waitcnt lgkmcnt(0)
        v_and_b32 v20, v20, v21
        v_and_b32 v22, v22, v23
        v_and_b32 v20, v20, v22
        v_cmp_eq_u32 vcc, 0, v20
        s_cbranch_vccnz L_fw{tag}
        """)
    for s in range(R):
        if s == HOLD:
            a("s_cmp_eq_u32 s62, 0\ns_cbranch_scc1 L_nohold" if HOLDM else "s_cmp_lg_u32 s62, 2\ns_cbranch_scc1 L_nohold")
            flag_wait(0)
            a("L_nohold:")
        pace(); kloads(s); pace(); vloads(s)
        if EARLY and s == 0: a("s_cmp_lg_u32 s62, 0\ns_cbranch_scc1 L_nob1\ns_barrier\nL_nob1:")
        stamp(8 + s, STAMPV_S)
        a(f"s_add_u32 s64, s64, 32\ns_and_b32 s64, s64, 2047\ns_mul_i32 {sOFF}, s64, 6144")
    a(f"""
    s_mul_i32 s59, {sW}, {NL*12288}
    s_add_u32 s59, s59, {L_STG}
    s_mov_b32 {sIDX}, {L_RB + 4*NPRE}
    """)
    if NL: flag_wait(1)
    for n in range(NL):
        for j in range(12):
            if j % 6 == 0: pace()
            off = 128 * (j % 3)
            a(f"s_add_u32 m0, s59, {n*12288 + j*1024 - off}")
            if j < 6: a(f"buffer_load_dwordx4 v{1+j//3}, {AR}, {sOFF} offen offset:{off} nt lds")
            else: a(f"buffer_load_dwordx4 v{3+(j-6)//3}, {BR}, {sOFF} offen offset:{off} nt lds")
        stamp(12 + n, STAMPV_S)
        a(f"s_add_u32 s64, s64, 32\ns_and_b32 s64, s64, 2047\ns_mul_i32 {sOFF}, s64, 6144")
    stamp(1, STAMPV_S)
    a(f"""
    v_and_b32 v14, 1, v0
    v_lshlrev_b32 v14, 4, v14
    v_mov_b32 v15, 0xffff
    v_lshlrev_b32 v14, v14, v15           ; 0xffff << 16*(l&1)
    v_lshrrev_b32 v13, 1, v13             ; (l&7)>>1
    v_mov_b32 v15, 0
    """)
    for r in range(4):
        a(f"v_cmp_eq_u32 vcc, {r}, v13\nv_cndmask_b32 v{5+r}, v15, v14, vcc")
    a(f"""
    v_mov_b32 v9, 0xff800000
    v_mov_b32 v10, 0x7f800000
    v_mov_b32 v11, 0
    """)
    for i in range(12): a(f"v_mov_b32 v{ACC+i}, 0")
    a(f"""
    s_lshl_b32 s57, {sW}, 2
    v_mov_b32 v18, s57
    s_mov_b32 s60, 1
    s_mov_b32 {sEND}, 0
    v_mov_b32 v17, {sIDX}
    v_bfe_u32 v13, v0, 3, 1
    v_lshlrev_b32 v13, 6, v13
    v_lshl_add_u32 v13, v12, 4, v13
    ds_read_b32 v16, v17
    L_qwait:
    """)
    spin_check()
    a(f"""
    s_sleep 1
    ds_read_b128 v[{Q}:{Q+3}], v13 offset:{L_QV}
    ds_read_b128 v[{Q+4}:{Q+7}], v13 offset:{L_QV+128}
    ds_read_b128 v[{Q+8}:{Q+11}], v13 offset:{L_QV+256}
    s_waitcnt lgkmcnt(0)
    v_max3_u32 v14, v{Q}, v{Q+1}, v{Q+2}
    v_max3_u32 v15, v{Q+3}, v{Q+4}, v{Q+5}
    v_max3_u32 v14, v14, v{Q+6}, v{Q+7}
    v_max3_u32 v15, v15, v{Q+8}, v{Q+9}
    v_max3_u32 v14, v14, v{Q+10}, v{Q+11}
    v_max_u32 v14, v14, v15
    v_cmp_eq_u32 vcc, -1, v14
    s_cbranch_vccnz L_qwait
    """)
    stamp(2, STAMPV_S)
    W = 12 * (D - 1) + 6

    def qk(slot):
        k0 = RING + 48 * slot
        for t in range(3):
            for u in range(2):
                d = D0 if u == 0 else D1
                c = "0" if t == 0 else f"v[{d}:{d+3}]"
                kr = k0 + 12 * u + 4 * t
                a(f"v_mfma_f32_16x16x32_bf16 v[{d}:{d+3}], v[{kr}:{kr+3}], v[{Q+4*t}:{Q+4*t+3}], {c}")

    def softmax():
        nr = a.lab("L_nr")
        a(f"""
        v_add_f32_dpp v12, v{D0+1}, v{D0} row_ror:8 row_mask:0xf bank_mask:0x3
        v_add_f32_dpp v13, v{D1+1}, v{D1} row_ror:8 row_mask:0xf bank_mask:0x3
        v_add_f32_dpp v12, v{D0+2}, v{D0+3} row_ror:8 row_mask:0xf bank_mask:0xc
        v_add_f32_dpp v13, v{D1+2}, v{D1+3} row_ror:8 row_mask:0xf bank_mask:0xc
        """)
        bf16_round2(12, 13)
        a(f"v_mul_f32 v12, 0x{SCALE:08x}, v12\nv_mul_f32 v13, 0x{SCALE:08x}, v13")
        bf16_round2(12, 13)
        a(f"""
        v_max_f32 v15, v12, v13
        v_cmp_gt_f32 vcc, v15, v9
        s_cbranch_vccz {nr}
        s_call_b64 s[66:67], L_rare
        {nr}:
        v_fmamk_f32 v12, v12, 0x{LOG2E:08x}, v10
        v_fmamk_f32 v13, v13, 0x{LOG2E:08x}, v10
        v_exp_f32 v12, v12
        v_exp_f32 v13, v13
        v_add_f32 v11, v11, v12
        v_cvt_pk_bf16_f32 v14, v12, v12
        v_cvt_pk_bf16_f32 v15, v13, v13
        v_add_f32 v11, v11, v13
        """)
        for r in range(4): a(f"v_and_b32 v{D0+r}, v14, v{5+r}")
        for r in range(4): a(f"v_and_b32 v{D1+r}, v15, v{5+r}")

    def pv(slot):
        v0 = RING + 48 * slot + 24
        for u in range(2):
            for t in range(3):
                d = D0 if u == 0 else D1
                vr = v0 + 12 * u + 4 * t
                a(f"v_mfma_f32_16x16x32_bf16 v[{ACC+4*t}:{ACC+4*t+3}], v[{d}:{d+3}], v[{vr}:{vr+3}], v[{ACC+4*t}:{ACC+4*t+3}]")

    def prog_stamp():
        if prof:
            pl = a.lab("L_pg")
            a(f"""
            s_and_b32 m0, s63, 63
            s_cmp_ge_u32 s63, 64
            s_cbranch_scc1 {pl}a
            v_writelane_b32 v53, s98, m0
            s_branch {pl}b
            {pl}a:
            v_writelane_b32 v54, s98, m0
            {pl}b:
            s_add_u32 s63, s63, 1
            """)

    def rb_next(s):
        a(f"""
        v_readfirstlane_b32 {sV_}, v16
        s_cmp_eq_u32 {sV_}, -1
        s_cbranch_scc1 L_rbw{s}
        L_rbok{s}:
        s_add_u32 s57, {sV_}, {sW}
        s_mul_i32 s57, s57, 6144
        s_cmp_eq_u32 {sV_}, {END}
        s_cselect_b32 {sOFF}, 0, s57
        s_cselect_b32 s38, 0, s38
        s_cselect_b32 s42, 0, s42
        s_cselect_b32 s57, 0, 4
        s_addc_u32 {sEND}, {sEND}, 0
        s_add_u32 {sIDX}, {sIDX}, s57
        v_mov_b32 v17, {sIDX}
        """)

    a("L_loop:")
    for s in range(D):
        if H3:
            assert D == 2
            a("s_waitcnt vmcnt(12)")
            qk(s)
            if prof: a("s_memrealtime s[98:99]")
            if s == 0: a("s_cmp_lg_u32 s60, 0\ns_cbranch_scc1 L_skipv")
            vloads(s ^ 1)
            if s == 0: a("L_skipv:")
            softmax()
            a("s_waitcnt vmcnt(12)")
            pv(s)
            a(f"s_cmp_lg_u32 {sEND}, 0\ns_cbranch_scc1 L_sdone\ns_waitcnt lgkmcnt(0)")
            prog_stamp()
            rb_next(s)
            kloads(s)
            a("ds_read_b32 v16, v17\nds_write_b32 v18, v17")
            continue
        a(f"s_waitcnt vmcnt({W})")
        qk(s)
        if prof: a("s_memrealtime s[98:99]")
        a("s_waitcnt lgkmcnt(0)")
        prog_stamp()
        rb_next(s)
        if not LATEK: kloads(s)
        a("ds_read_b32 v16, v17\nds_write_b32 v18, v17")
        softmax()
        a(f"s_waitcnt vmcnt({W-6 if LATEK else W})")
        pv(s)
        a(f"s_cmp_eq_u32 {sEND}, {D}\ns_cbranch_scc1 L_sdone")
        if LATEK: kloads(s)
        vloads(s)
    a("s_cmp_eq_u32 s60, 0\ns_cbranch_scc1 L_loop")
    a(f"s_waitcnt vmcnt({18 if H3 else 12*D})")
    for s in range(D, 3):
        qk(s); softmax(); pv(s)
    a(f"""
    s_mov_b32 s60, {NL}
    v_lshlrev_b32 v52, 4, v0
    v_add_u32 v52, s59, v52
    L_det:
    """)
    qk(3); softmax(); pv(3)
    if NL:
        a("s_cmp_eq_u32 s60, 0\ns_cbranch_scc1 L_detx")
        for j in range(12):
            a(f"ds_read_b128 v[{RING+144+4*j}:{RING+144+4*j+3}], v52 offset:{1024*j}")
        a(f"""
        v_add_u32 v52, 12288, v52
        s_sub_u32 s60, s60, 1
        s_waitcnt lgkmcnt(0)
        s_branch L_det
        L_detx:
        v_mov_b32 v52, 1
        ds_write_b32 v18, v52 offset:{L_FREE}
        """)
    a("s_branch L_loop")
    for s in range(D):
        if JIT: a(f"L_rbw{s}:\nv_add_u32 v14, 4, v17\nds_write_b32 v18, v14\nL_rbv{s}:")
        else: a(f"L_rbw{s}:\nL_rbv{s}:")
        spin_check()
        a(f"""
        ds_read_b32 v16, v17
        s_waitcnt lgkmcnt(0)
        v_readfirstlane_b32 {sV_}, v16
        s_cmp_eq_u32 {sV_}, -1
        s_cbranch_scc1 L_rbv{s}
        s_branch L_rbok{s}
        """)
    a(f"""
    L_rare:
    v_max_f32_dpp v15, v15, v15 row_ror:8 row_mask:0xf bank_mask:0xf
    v_max_f32_dpp v15, v15, v15 row_bcast:15 row_mask:0xa bank_mask:0xf
    v_max_f32_dpp v15, v15, v15 row_bcast:31 row_mask:0xc bank_mask:0xf
    v_readlane_b32 s57, v15, 63
    v_mov_b32 v9, s57
    v_mul_f32 v15, 0x{0x80000000 | LOG2E:08x}, v9
    v_sub_f32 v14, v15, v10
    v_exp_f32 v14, v14
    v_mov_b32 v10, v15
    v_mul_f32 v11, v11, v14
    """)
    for i in range(12): a(f"v_mul_f32 v{ACC+i}, v{ACC+i}, v14")
    a("s_setpc_b64 s[66:67]")
    a("L_sdone:")
    stamp(3, STAMPV_S)
    if dbgt:
        a("s_cmp_lg_u32 s3, 4\ns_cbranch_scc1 L_nd1")
        dbgstamp(2, True); dbgstamp(3)
        a("L_nd1:")
    a(f"""
    v_add_f32_dpp v11, v11, v11 row_ror:8 row_mask:0xf bank_mask:0xf
    v_and_b32 v12, 7, v0
    v_lshlrev_b32 v12, 5, v12
    v_add_f32_dpp v11, v11, v11 row_bcast:15 row_mask:0xa bank_mask:0xf
    v_bfe_u32 v13, v0, 4, 1
    v_lshl_add_u32 v12, v13, 4, v12
    v_add_f32_dpp v11, v11, v11 row_bcast:31 row_mask:0xc bank_mask:0xf
    v_lshrrev_b32 v13, 5, v0
    v_mul_u32_u24 v13, 768, v13
    s_mul_i32 s57, {sW}, 1536
    v_add3_u32 v12, v12, v13, s57
    s_lshl_b32 s57, {sW}, 3
    v_mov_b32 v13, s57
    s_mov_b32 exec_lo, 0x00ff00ff
    s_mov_b32 exec_hi, 0xff00ff00
    ds_write_b128 v12, v[{ACC}:{ACC+3}] offset:{L_PART}
    ds_write_b128 v12, v[{ACC+4}:{ACC+7}] offset:{L_PART+256}
    ds_write_b128 v12, v[{ACC+8}:{ACC+11}] offset:{L_PART+512}
    s_mov_b32 exec_lo, 0
    s_mov_b32 exec_hi, 0x80000000
    ds_write_b64 v13, v[10:11] offset:{L_ML}
    s_waitcnt lgkmcnt(0)
    s_barrier
    """)
    stamp_dump(STAMPV_S)
    if prof:
        a(f"""
        v_add_u32 v1, 0x80000, v1
        global_store_dword v1, v53, s[{sWS}:{sWS+1}]
        v_add_u32 v1, 0x80000, v1
        global_store_dword v1, v54, s[{sWS}:{sWS+1}]
        s_waitcnt vmcnt(0)
        """)
    a(f"""
    s_endpgm
    L_fail:
    s_mov_b64 exec, 1
    s_lshl_b32 s52, s2, 3
    s_add_u32 s52, s52, s3
    s_or_b32 s52, s52, 0xdead0000
    v_mov_b32 v1, 0
    v_mov_b32 v2, s52
    global_store_dword v1, v2, s[{sDBG}:{sDBG+1}]
    L_exit:
    s_endpgm
    """)

    body = pad(a.L)
    hdr = open(os.path.join(os.path.dirname(os.path.abspath(__file__)), "..", "cdna_kernels", NAME + ".s.ref")).read().split("\n")
    hdr = [l for l in hdr if l.startswith(";") and "@launch" not in l and "Override launch" not in l and "grid=ceil" not in l]
    out = hdr + [f"; @launch grid=(256,1,1) block=(512,1,1) lds={LDS_BYTES}",
                 '.amdgcn_target "amdgcn-amd-amdhsa--gfx950"', ".text", f".globl {NAME}_kernel", ".p2align 8",
                 f".type {NAME}_kernel,@function", f"{NAME}_kernel:"] + body + [
        '.section .rodata,"a"', ".p2align 6", f".amdhsa_kernel {NAME}_kernel",
        "  .amdhsa_next_free_vgpr 256", "  .amdhsa_next_free_sgpr 102", "  .amdhsa_accum_offset 256",
        "  .amdhsa_group_segment_fixed_size 0", "  .amdhsa_kernarg_size 112", "  .amdhsa_user_sgpr_count 2",
        "  .amdhsa_user_sgpr_kernarg_segment_ptr 1", "  .amdhsa_system_sgpr_workgroup_id_x 1",
        "  .amdhsa_float_denorm_mode_32 3", ".end_amdhsa_kernel"]
    return "\n".join(out) + "\n"


if __name__ == "__main__":
    outp = sys.argv[1]
    kw = eval("dict(" + (sys.argv[2] if len(sys.argv) > 2 else "") + ")")
    open(outp, "w").write(gen(**kw))
```

```python
import sys, os
sys.path.insert(0, os.path.dirname(os.path.abspath(__file__)))
from asmlib import Asm, pad

NAME = "adaLN_cond__mha_block_cached__glu_gated_geglu__decode"

WS_EPOCH = 0
WS_CLR = 256
WS_CNT = 4096
WS_MOD = 0x4000
WS_Q = 0x8000
WS_PO = 0x80000
WS_PML = 0xC0000
WS_MB = WS_MOD + 5120
WS_GU = 0xC4000
WS_AP = 0xC5800
WS_USED = 0x100000
WS_STAMP = 0x100000
L_PROG = 0
L_SB = 16
L_FREE = 32
L_FL0 = 48
L_SB2 = 64
L_RB = 128
L_QV = 1152
L_XV = 2048
L_PART = 5120
L_ML = 11264
L_STAT = 11328
L_STG = 12288

END = 0x7FFFFFFF
OOB = 0x4000000
LOG2E = 0x3FB8AA3B
SCALE = 0x3D93CD3A
HEADBYTES = 32768 * 384

sX, sK, sV, sWQ, sWO, sGATE, sUP, sDOWN, sC, sWM, sOUT, sDBG, sWS = 4, 6, 8, 10, 12, 16, 18, 20, 22, 24, 26, 28, 30
WSR = "s[32:35]"; AR = "s[36:39]"; BR = "s[40:43]"; CR = "s[44:47]"
sH, sS, sTAG, sE = "s48", "s49", "s50", "s51"
sSPIN = "s68"


def gen(NSTAT=52, D=2, NL=3, prof=False, SH=3, LA=0, dbgt=False, PACE=10, HOLD=9, HOLDM=True, SLOW=0, DLY=0, JIT=0, MINT=True, EM=8, NMIN=1, EARLY=True, LATEK=False, GSL=2, H3=True, PQ=3, SQ=12, GPH=5, T2G=2, GATE3=2, RAP=1, DRY=True, SKIPZ=True, QD=0, XP='', LP3=False, SIM3=True, SIM2=True, PERT=None):
    a = Asm()
    PR = 512 - 8 * NSTAT
    R = 4
    NPRE = R + NL
    assert NSTAT <= 64 and NSTAT >= NPRE + D and NSTAT + PR + 1 <= 256
    LDS_BYTES = L_STG + max(98304, NL * 49152)
    STAMPV_S, STAMPV_H = 19, 63

    def stamp(i, v):
        if prof == 2 and not ((v == STAMPV_H and i in (0, 12)) or (v == STAMPV_S and i in (0, 3))): return
        if prof:
            a(f"""
            s_memrealtime s[98:99]
            s_waitcnt lgkmcnt(0)
            v_writelane_b32 v{v}, s98, {i}
            """)

    def stamp_dump(v):
        if prof:
            a(f"""
            s_mov_b64 exec, -1
            s_lshl_b32 s98, s2, 3
            s_add_u32 s98, s98, s3
            s_lshl_b32 s98, s98, 8
            s_add_u32 s98, s98, {WS_STAMP}
            v_lshlrev_b32 v1, 2, v0
            v_add_u32 v1, s98, v1
            global_store_dword v1, v{v}, s[{sWS}:{sWS+1}]
            s_waitcnt vmcnt(0)
            """)

    def dbgstamp(slot, inv=False):
        if dbgt:
            a(f"""
            s_memrealtime s[98:99]
            s_mov_b64 s[96:97], exec
            s_waitcnt lgkmcnt(0)
            {"s_not_b32 s98, s98" if inv else ""}
            s_mov_b64 exec, 1
            v_mov_b32 v254, s98
            v_mov_b32 v255, {4*slot}
            global_atomic_umax v255, v254, s[{sDBG}:{sDBG+1}] sc1
            s_mov_b64 exec, s[96:97]
            """)

    def spin_check():
        a(f"s_sub_u32 {sSPIN}, {sSPIN}, 1\ns_cbranch_scc1 L_fail")

    def srd(r, base, size):
        a(f"""
        s_mov_b32 s{r}, s{base}
        s_mov_b32 s{r+1}, s{base+1}
        s_mov_b32 s{r+2}, {size}
        s_mov_b32 s{r+3}, 0x20000
        """)

    def bf16_round1(v, t=None):
        a(f"v_cvt_pk_bf16_f32 v{v}, v{v}, v{v}\nv_and_b32 v{v}, 0xffff0000, v{v}")

    def bf16_round2(v0, v1):
        a(f"""
        v_cvt_pk_bf16_f32 v{v1}, v{v0}, v{v1}
        v_lshlrev_b32 v{v0}, 16, v{v1}
        v_and_b32 v{v1}, 0xffff0000, v{v1}
        """)

    def unpack2(src, lo, hi):
        assert lo != src
        a(f"v_lshlrev_b32 v{lo}, 16, v{src}\nv_and_b32 v{hi}, 0xffff0000, v{src}")

    def reduce64(vs):
        for m in ("row_ror:8 row_mask:0xf", "row_ror:4 row_mask:0xf", "row_ror:2 row_mask:0xf", "row_ror:1 row_mask:0xf",
                  "row_bcast:15 row_mask:0xa", "row_bcast:31 row_mask:0xc"):
            for v in vs:
                a(f"v_add_f32_dpp v{v}, v{v}, v{v} {m} bank_mask:0xf")

    def silu(x, t):
        a(f"""
        v_mul_f32 v{t}, 0x{0x80000000 | LOG2E:08x}, v{x}
        v_exp_f32 v{t}, v{t}
        v_add_f32 v{t}, 1.0, v{t}
        v_rcp_f32 v{t+1}, v{t}
        v_mul_f32 v{t+2}, v{x}, v{t+1}
        v_fma_f32 v{t}, -v{t+2}, v{t}, v{x}
        v_fma_f32 v{x}, v{t}, v{t+1}, v{t+2}
        v_cmp_class_f32 vcc, v{x}, 3
        v_cndmask_b32 v{x}, v{x}, v{t+2}, vcc
        """)

    def div_rn(q, n, d, r, t):
        a(f"""
        v_mul_f32 v{q}, v{n}, v{r}
        v_fma_f32 v{t}, -v{q}, v{d}, v{n}
        v_fmac_f32 v{q}, v{t}, v{r}
        """)

    def soft_barrier(idx):
        lab = a.lab("L_sb")
        a(f"""
        v_mov_b32 v1, {L_SB + 4*idx if idx < 4 else L_SB2}
        v_mov_b32 v2, 1
        s_mov_b64 exec, 1
        ds_add_u32 v1, v2
        s_mov_b64 exec, -1
        {lab}:
        """)
        spin_check()
        a(f"""
        ds_read_b32 v2, v1
        s_waitcnt lgkmcnt(0)
        v_readfirstlane_b32 s52, v2
        s_cmp_lt_u32 s52, 4
        s_cbranch_scc1 {lab}
        """)

    def gemv(nkb, D, xaddr, wbase=64, tmp=32, ntmp=7):
        for i in range(min(ntmp, nkb)):
            a(f"ds_read_b128 v[{tmp+4*i}:{tmp+4*i+3}], v{xaddr} offset:{64*i}")
        for kb in range(nkb):
            outstanding = min(ntmp, nkb - kb) - 1
            t = tmp + 4 * (kb % ntmp)
            a(f"s_waitcnt lgkmcnt({outstanding})")
            c = "0" if kb == 0 else f"v[{D}:{D+3}]"
            a(f"v_mfma_f32_16x16x32_bf16 v[{D}:{D+3}], v[{wbase+4*kb}:{wbase+4*kb+3}], v[{t}:{t+3}], {c}")
            if kb + ntmp < nkb:
                a(f"ds_read_b128 v[{t}:{t+3}], v{xaddr} offset:{64*(kb+ntmp)}")

    a(f"""
    s_cmp_ge_u32 s2, 256
    s_cbranch_scc1 L_exit
    s_load_dwordx16 s[4:19], s[0:1], 0
    s_load_dwordx8 s[20:27], s[0:1], 64
    s_load_dwordx4 s[28:31], s[0:1], 96
    v_lshrrev_b32 v1, 6, v0
    v_and_b32 v0, 63, v0
    s_lshr_b32 {sH}, s2, 3
    v_readfirstlane_b32 s3, v1
    s_and_b32 {sS}, s2, 7
    s_mov_b32 {sSPIN}, 0x200000
    s_sub_u32 s63, {sS}, {sH}
    s_and_b32 s63, s63, 7
    s_cmp_eq_u32 s63, 3
    s_cselect_b32 s62, 1, 0
    s_cmp_lt_u32 {sH}, 20
    s_cselect_b32 s62, s62, 0
    s_cmp_lt_u32 s63, 3
    s_cselect_b32 s62, 2, s62
    {"s_mov_b32 s62, 0" if 'noq' in XP else ""}
    s_cmp_ge_u32 s3, 4
    s_cbranch_scc1 L_stream
    """)
    sISM = "s62"

    def ppoll(tag, P, nld, stagger, issue, check, take):
        for b in range(P):
            issue(b)
            if b < P - 1: a(f"s_sleep {stagger}")
        a(f"L_pp{tag}:")
        for b in range(P):
            a(f"s_waitcnt vmcnt({nld*(P-1)})")
            check(b)
            a(f"s_cbranch_vccz L_pp{tag}_{b}")
            if b == 0: spin_check()
            issue(b)
        a(f"s_branch L_pp{tag}")
        for b in range(P):
            a(f"L_pp{tag}_{b}:")
            take(b)
            if b < P - 1: a(f"s_branch L_pp{tag}_x")
        a(f"L_pp{tag}_x:")

    def tag_calc():
        a(f"s_mul_i32 {sTAG}, {sE}, 0x9E3779B1\ns_add_u32 {sTAG}, {sTAG}, 0x7F4A7C15")

    def silu_slice():
        unpack2(12, 14, 15); unpack2(13, 16, 17)
        for i in range(4): silu(14 + i, 18)
        a(f"""
        v_cvt_pk_bf16_f32 v12, v14, v15
        v_cvt_pk_bf16_f32 v13, v16, v17
        s_mov_b32 exec_hi, 0xff
        ds_write_b64 v10, v[12:13] offset:{L_XV}
        s_mov_b64 exec, -1
        """)

    def stage_tr(wbase, nkb, va0, va1):
        for kb in range(nkb):
            for u in range(2):
                r = wbase + 4 * kb + 2 * u
                va, off = (va0, kb * 4096 + u * 512) if kb < 16 else (va1, (kb - 16) * 4096 + u * 512)
                a(f"ds_read_b64_tr_b16 v[{r}:{r+1}], v{va} offset:{off}")
            if kb % 4 == 3: a("s_waitcnt lgkmcnt(6)" if kb < nkb - 1 else "s_waitcnt lgkmcnt(0)")

    def mod_publish(soff):
        a(f"""
        v_lshlrev_b32 v10, 4, v5
        v_mov_b32 v22, {sTAG}
        v_mov_b32 v23, {sTAG}
        v_cvt_pk_bf16_f32 v20, v16, v17
        v_cvt_pk_bf16_f32 v21, v18, v19
        s_mov_b32 exec_lo, 0x00010001
        s_mov_b32 exec_hi, 0x00010001
        buffer_store_dwordx4 v[20:23], v10, {WSR}, {soff} offen sc1
        s_mov_b64 exec, -1
        """)

    a("s_setprio 3")
    if prof: a(f"v_mov_b32 v{STAMPV_H}, 0")
    stamp(0, STAMPV_H)
    a(f"""
    v_lshrrev_b32 v3, 3, v0
    v_and_b32 v4, 7, v0
    v_lshrrev_b32 v5, 4, v0
    v_and_b32 v6, 15, v0
    v_lshrrev_b32 v7, 2, v6
    v_lshl_add_u32 v7, v5, 3, v7
    v_lshlrev_b32 v7, 7, v7
    v_and_b32 v8, 3, v6
    v_lshl_add_u32 v7, v8, 3, v7
    v_lshlrev_b32 v11, 2, v0
    v_mov_b32 v12, -1
    v_mov_b32 v13, -1
    s_cmp_eq_u32 s3, 2
    s_cbranch_scc1 L_init2
    s_cmp_eq_u32 s3, 1
    s_cbranch_scc0 L_init3
    s_mul_i32 s52, {sH}, {GPH}
    s_add_u32 s52, s52, {sS}
    s_lshl_b32 s52, s52, 2
    v_lshlrev_b32 v10, 5, v0
    v_add_u32 v10, s52, v10
    v_and_b32 v10, 2047, v10
    v_cmp_gt_u32 vcc, {NSTAT}, v0
    v_cndmask_b32 v10, v12, v10, vcc
    ds_write_b32 v11, v10 offset:{L_RB}
    ds_write_b32 v11, v12 offset:{L_RB+256}
    ds_write_b32 v11, v12 offset:{L_RB+512}
    ds_write_b32 v11, v12 offset:{L_RB+768}
    s_branch L_init_done
    L_init2:
    v_lshlrev_b32 v10, 3, v0
    ds_write_b64 v10, v[12:13] offset:{L_QV}
    s_branch L_init_done
    L_init3:
    v_and_b32 v10, 31, v0
    v_lshlrev_b32 v10, 2, v10
    v_mov_b32 v12, 0
    ds_write_b32 v10, v12 offset:0
    L_init_done:
    v_min_u32 v13, 39, v0
    s_mul_i32 s52, s3, 320
    v_lshl_add_u32 v10, v13, 3, s52       ; v10 = (160 w + 4 p) * 2
    s_lshl_b32 s58, s3, 2
    s_waitcnt lgkmcnt(0)
    s_load_dword {sE}, s[{sWS}:{sWS+1}], {WS_EPOCH}
    """)
    srd(32, sWS, WS_USED)
    a(f"""
    s_cmp_eq_u32 {sISM}, 0
    s_cbranch_scc1 L_issued
    s_mov_b32 s39, 0x20000
    s_cmp_eq_u32 {sISM}, 2
    s_cbranch_scc1 L_pq
    """)
    srd(44, sC, 1280)
    a(f"""
    buffer_load_dwordx2 v[12:13], v10, {CR}, 0 offen
    s_mov_b32 s36, s{sWM}
    s_mov_b32 s37, s{sWM+1}
    s_mov_b32 s38, {640*7680}
    s_mov_b32 s57, 7680
    s_lshl_b32 s56, {sH}, 7
    s_lshl_b32 s59, {sH}, 8
    s_add_u32 s59, s59, {WS_MOD}
    s_branch L_pdma
    L_pq:
    """)
    srd(40, sX, 1280)
    for i in range(5):
        a(f"buffer_load_dword v{24+i}, v11, {BR}, 0 offen offset:{256*i}")
    a(f"""
    buffer_load_dwordx2 v[30:31], v10, {BR}, 0 offen
    s_mov_b32 s36, s{sWQ}
    s_mov_b32 s37, s{sWQ+1}
    s_mov_b32 s38, {640*12288}
    s_mov_b32 s57, 12288
    s_mul_i32 s53, {sH}, 3
    s_add_u32 s53, s53, s63
    s_lshl_b32 s56, s53, 7
    s_lshl_b32 s59, s53, 8
    s_add_u32 s59, s59, {WS_Q}
    s_or_b32 s52, s63, s3
    s_cmp_lg_u32 s52, 0
    s_cbranch_scc1 L_pdma
    s_lshl_b32 s52, {sH}, 8
    s_add_u32 s52, s52, {WS_CNT}
    v_mov_b32 v9, 0
    s_mov_b64 exec, 1
    buffer_store_dword v9, v9, {WSR}, s52 offen sc1
    s_mov_b64 exec, -1
    L_pdma:
    v_mul_lo_u32 v9, s57, v3
    v_lshl_add_u32 v9, v4, 4, v9
    s_lshl_b32 s52, s57, 3
    s_mul_i32 s52, s52, s3
    s_add_u32 s56, s56, s52
    s_lshl_b32 s57, s57, 5
    s_lshl_b32 s52, s3, 10
    s_add_u32 m0, s52, {L_STG}
    s_mov_b32 s52, 20
    L_mdma:
    buffer_load_dwordx4 v9, {AR}, s56 offen nt lds
    s_add_u32 m0, m0, 4096
    s_add_u32 s56, s56, s57
    s_sub_u32 s52, s52, 1
    s_cmp_lg_u32 s52, 0
    s_cbranch_scc1 L_mdma
    s_lshl_b32 s52, s3, 6
    s_add_u32 s59, s59, s52
    L_issued:
    s_barrier
    """)
    stamp(1, STAMPV_H)
    a(f"""
    v_mov_b32 v47, s58
    v_mov_b32 v46, 1
    s_cmp_lg_u32 {sISM}, 0
    s_cbranch_scc1 L_prod
    ds_write_b32 v47, v46 offset:{L_FL0}
    s_waitcnt lgkmcnt(0)
    """)
    tag_calc()
    a(f"""
    s_branch L_qp
    L_prod:
    s_waitcnt vmcnt(20)
    s_cmp_eq_u32 {sISM}, 2
    s_cbranch_scc1 L_ln
    """)
    silu_slice()
    a("s_branch L_pw\nL_ln:")
    for i in range(5):
        unpack2(24 + i, 32 + 2 * i, 33 + 2 * i)
    a("v_readfirstlane_b32 s52, v32")
    for i in range(10):
        a(f"v_subrev_f32 v{32+i}, s52, v{32+i}")
    a("v_add_f32 v42, v32, v33\nv_mul_f32 v43, v32, v32\nv_fmac_f32 v43, v33, v33")
    for i in range(2, 10):
        a(f"v_add_f32 v42, v42, v{32+i}\nv_fmac_f32 v43, v{32+i}, v{32+i}")
    reduce64([42, 43])
    a(f"""
    v_readlane_b32 s53, v42, 63
    v_readlane_b32 s54, v43, 63
    v_mov_b32 v44, 0x3acccccd             ; 1/640
    v_mul_f32 v42, s53, v44               ; S1/n
    v_mul_f32 v43, s54, v44               ; S2/n
    v_fma_f32 v43, -v42, v42, v43         ; var
    v_add_f32 v42, s52, v42               ; mean
    """)
    bf16_round2(42, 43)
    a("v_add_f32 v43, 0x3727c5ac, v43")
    bf16_round1(43)
    a("v_sqrt_f32 v43, v43")
    bf16_round1(43)
    a("v_rcp_f32 v44, v43")
    unpack2(30, 32, 33); unpack2(31, 34, 35)
    for k in range(4): a(f"v_sub_f32 v{32+k}, v{32+k}, v42")
    bf16_round2(32, 33); bf16_round2(34, 35)
    for k in range(4): div_rn(28 + k, 32 + k, 43, 44, 45)
    bf16_round2(28, 29); bf16_round2(30, 31)
    a(f"""
    L_pw:
    s_lshl_b32 s52, s3, 5
    v_add_u32 v14, s52, v7
    v_add_u32 v14, {L_STG}, v14
    v_add_u32 v15, 0x10000, v14
    v_lshlrev_b32 v12, 4, v5
    v_add_u32 v12, {L_XV}, v12
    v_lshlrev_b32 v13, 1, v10
    s_mov_b32 s54, {WS_MOD}
    s_waitcnt vmcnt(0) lgkmcnt(0)
    """)
    tag_calc()
    soft_barrier(3)
    stamp(2, STAMPV_H)
    stage_tr(64, 20, 14, 15)
    a(f"""
    s_cmp_eq_u32 {sISM}, 2
    s_cbranch_scc0 L_pg
    L_mp:
    """)
    spin_check()
    a(f"""
    buffer_load_dwordx4 v[16:19], v13, {WSR}, s54 offen sc1
    buffer_load_dwordx4 v[20:23], v13, {WSR}, s54 offen offset:2560 sc1
    s_waitcnt vmcnt(0)
    v_xor_b32 v24, {sTAG}, v18
    v_bitop3_b32 v24, v24, v22, {sTAG} bitop3:0xf6
    v_cmp_ne_u32 vcc, 0, v24
    s_cbranch_vccnz L_mp
    """)
    stamp(3, STAMPV_H)
    unpack2(21, 22, 23); unpack2(20, 24, 21)
    a("v_add_f32 v20, 1.0, v24")
    for k in range(1, 4): a(f"v_add_f32 v{20+k}, 1.0, v{20+k}")
    unpack2(16, 24, 25); unpack2(17, 26, 27)
    bf16_round2(20, 21); bf16_round2(22, 23)
    for k in (0, 2): a(f"v_pk_mul_f32 v[{20+k}:{21+k}], v[{28+k}:{29+k}], v[{20+k}:{21+k}]")
    bf16_round2(20, 21); bf16_round2(22, 23)
    for k in (0, 2): a(f"v_pk_add_f32 v[{20+k}:{21+k}], v[{20+k}:{21+k}], v[{24+k}:{25+k}]")
    a(f"""
    v_cvt_pk_bf16_f32 v20, v20, v21
    v_cvt_pk_bf16_f32 v21, v22, v23
    ds_write_b64 v10, v[20:21] offset:{L_XV}
    s_waitcnt lgkmcnt(0)
    """)
    soft_barrier(4)
    a("L_pg:")
    gemv(20, 16, 12)
    mod_publish("s59")
    a(f"v_mov_b32 v47, s58\nv_mov_b32 v46, 1\nds_write_b32 v47, v46 offset:{L_FL0}")
    stamp(4, STAMPV_H)
    a(f"""
    L_qp:
    s_cmp_lg_u32 s3, 0
    s_cbranch_scc1 L_mid
    v_min_u32 v15, 47, v0
    v_lshlrev_b32 v11, 3, v15
    v_lshlrev_b32 v15, 4, v15
    s_mul_i32 s56, {sH}, 768
    s_add_u32 s56, s56, {WS_Q}
    """)
    if 'noq' in XP:
        a(f"""
        s_lshl_b32 s52, {sH}, 8
        s_add_u32 s52, s52, {WS_CNT}
        v_mov_b32 v16, 0
        v_mov_b32 v17, 0
        s_mov_b64 exec, 1
        buffer_store_dword v16, v16, {WSR}, s52 offen sc1
        s_mov_b64 exec, -1
        """)
    else: ppoll("q", PQ, 1, SQ,
          lambda b: a(f"buffer_load_dwordx4 v[{144+4*b}:{147+4*b}], v15, {WSR}, s56 offen sc1"),
          lambda b: a(f"v_cmp_ne_u32 vcc, {sTAG}, v{146+4*b}"),
          lambda b: a(f"v_min_u32 v16, -2, v{144+4*b}\nv_min_u32 v17, -2, v{145+4*b}"))
    a(f"ds_write_b64 v11, v[16:17] offset:{L_QV}")
    stamp(5, STAMPV_H)

    sROLE, sG, sK5, sID, sSTR, sSOF, sNB = "s69", "s70", "s71", "s72", "s73", "s74", "s75"
    a(f"""
    L_mid:
    s_setprio 0
    s_waitcnt vmcnt(0)
    s_mov_b32 {sROLE}, 0
    {"s_branch L_mid_done" if 'norole' in XP else ""}
    s_mov_b32 s39, 0x20000
    s_cmp_ge_u32 {sS}, 6
    s_cbranch_scc1 L_rclr
    s_cmp_ge_u32 {sS}, 3
    s_cbranch_scc1 L_rs345
    s_lshl_b32 s53, {sS}, 1
    s_sub_u32 s52, {sH}, s53
    s_and_b32 s52, s52, 31
    s_cmp_eq_u32 {sS}, 2
    s_cselect_b32 s54, 20, 30
    s_sub_u32 {sID}, s52, s54
    s_add_u32 {sID}, {sID}, s53
    s_cmp_ge_u32 s52, s54
    s_cbranch_scc1 L_r5
    s_mul_i32 {sG}, s52, 205
    s_lshr_b32 {sG}, {sG}, 11
    s_mul_i32 s54, {sG}, 10
    s_sub_u32 {sK5}, s52, s54
    s_mul_i32 s54, {sS}, 3
    s_add_u32 {sG}, {sG}, s54
    s_branch L_r2
    L_rs345:
    s_cmp_eq_u32 {sS}, 5
    s_cbranch_scc1 L_rs5
    s_sub_u32 s53, {sS}, 3
    s_mul_i32 {sID}, s53, 24
    s_add_u32 {sID}, {sID}, {sH}
    s_cmp_lt_u32 {sH}, 24
    s_cbranch_scc1 L_r3
    s_lshl_b32 s53, s53, 3
    s_add_u32 {sID}, {sH}, s53
    s_sub_u32 {sID}, {sID}, 8
    s_branch L_r5
    L_rs5:
    s_sub_u32 {sID}, {sH}, 20
    s_cmp_lt_u32 {sID}, 10
    s_cbranch_scc1 L_r4
    s_add_u32 {sID}, {sH}, 2
    s_and_b32 {sID}, {sID}, 31
    s_cmp_lt_u32 {sID}, 8
    s_cbranch_scc0 L_mid_done
    s_add_u32 {sID}, {sID}, 32
    s_branch L_r5
    L_rclr:
    s_lshl_b32 s52, {sS}, 5
    s_add_u32 s52, s52, {sH}
    """)
    a(f"""
    s_cmp_lg_u32 s3, 1
    s_cbranch_scc1 L_mid_done
    v_mov_b32 v12, -1
    v_mov_b32 v13, -1
    v_mov_b32 v14, -1
    v_mov_b32 v15, -1
    v_lshlrev_b32 v10, 4, v0
    s_sub_u32 s53, s52, 192
    s_lshl_b32 s52, s53, 10
    s_add_u32 s52, s52, {WS_GU}
    s_branch L_clr1
    L_clr:
    buffer_store_dwordx4 v[12:15], v10, {WSR}, s52 offen sc1
    s_add_u32 s52, s52, 65536
    L_clr1:
    s_cmp_lt_u32 s52, {WS_AP + RAP*20480}
    s_cbranch_scc1 L_clr
    v_mov_b32 v11, {sTAG}
    v_mov_b32 v10, 0
    s_lshl_b32 s52, s53, 2
    s_add_u32 s52, s52, {WS_CLR}
    s_waitcnt vmcnt(0)
    s_mov_b64 exec, 1
    buffer_store_dword v11, v10, {WSR}, s52 offen sc1
    s_mov_b64 exec, -1
    s_branch L_mid_done
    L_r2:
    s_mov_b32 {sROLE}, 2
    s_mov_b32 s36, s{sWO}
    s_mov_b32 s37, s{sWO+1}
    s_mov_b32 s38, {6144*1280}
    s_mov_b32 {sSTR}, 1280
    s_mul_i32 {sSOF}, {sG}, {768*1280}
    s_lshl_b32 s52, {sK5}, 7
    s_add_u32 {sSOF}, {sSOF}, s52
    s_mov_b32 {sNB}, 24
    s_branch L_stage
    L_r3:
    s_mov_b32 {sROLE}, 3
    s_cmp_ge_u32 {sID}, 24
    s_cselect_b32 s36, s{sUP}, s{sGATE}
    s_cselect_b32 s37, s{sUP+1}, s{sGATE+1}
    s_cselect_b32 s52, 24, 0
    s_mov_b32 s38, {640*3072}
    s_mov_b32 {sSTR}, 3072
    s_sub_u32 s52, {sID}, s52
    s_lshl_b32 {sSOF}, s52, 7
    s_mov_b32 {sNB}, 20
    s_branch L_stage
    L_r4:
    s_mov_b32 {sROLE}, 4
    s_mov_b32 s36, s{sDOWN}
    s_mov_b32 s37, s{sDOWN+1}
    s_mov_b32 s38, {1536*1280}
    s_mov_b32 {sSTR}, 1280
    s_lshl_b32 {sSOF}, {sID}, 7
    s_mov_b32 {sNB}, 24
    s_branch L_stage
    L_r5:
    s_mov_b32 {sROLE}, 5
    s_mov_b32 s36, s{sWM}
    s_mov_b32 s37, s{sWM+1}
    s_mov_b32 s38, {640*7680}
    s_mov_b32 {sSTR}, 7680
    s_lshl_b32 {sSOF}, {sID}, 7
    s_add_u32 {sSOF}, {sSOF}, 2560
    s_mov_b32 {sNB}, 20
    """)
    a(f"""
    L_stage:
    v_mul_lo_u32 v9, {sSTR}, v3
    v_lshl_add_u32 v9, v4, 4, v9
    s_lshl_b32 s53, {sSTR}, 3
    s_mul_i32 s52, s53, s3
    s_add_u32 {sSOF}, {sSOF}, s52
    s_lshl_b32 s53, {sSTR}, 5
    s_lshl_b32 s54, s3, 5
    v_add_u32 v10, s54, v7
    v_add_u32 v10, {L_STG}, v10
    v_add_u32 v11, 0x10000, v10
    """)
    if NL:
        a(f"v_mov_b32 v1, {L_FREE}\nL_freew:")
        spin_check()
        a("""
        s_sleep 4
        ds_read_b128 v[16:19], v1
        s_waitcnt lgkmcnt(0)
        v_and_b32 v16, v16, v17
        v_and_b32 v18, v18, v19
        v_and_b32 v16, v16, v18
        v_cmp_eq_u32 vcc, 0, v16
        s_cbranch_vccnz L_freew
        """)
    assert NL
    a(f"s_cmp_lg_u32 {sROLE}, 5\ns_cbranch_scc1 L_nosilu")
    srd(44, sC, 1280)
    a(f"""
    v_mov_b32 v21, v10
    s_mul_i32 s52, s3, 320
    v_lshlrev_b32 v10, 3, v0
    buffer_load_dwordx2 v[12:13], v10, {CR}, s52 offen
    v_add_u32 v10, s52, v10
    s_waitcnt vmcnt(0)
    """)
    silu_slice()
    a("v_mov_b32 v10, v21\nL_nosilu:")

    def stage_dma():
        lab = a.lab("L_dma")
        a(f"""
        s_lshl_b32 s52, s3, 10
        s_add_u32 m0, s52, {L_STG}
        s_mov_b32 s55, {sNB}
        {lab}:
        buffer_load_dwordx4 v9, {AR}, {sSOF} offen nt lds
        s_add_u32 m0, m0, 4096
        s_add_u32 {sSOF}, {sSOF}, s53
        s_sub_u32 s55, s55, 1
        s_cmp_lg_u32 s55, 0
        s_cbranch_scc1 {lab}
        s_waitcnt vmcnt(0) lgkmcnt(0)
        """)

    stage_dma()
    soft_barrier(0)
    stage_tr(64, 24, 10, 11)
    a(f"s_cmp_lg_u32 {sROLE}, 4\ns_cbranch_scc1 L_staged")
    soft_barrier(1)
    stage_dma()
    soft_barrier(2)
    stage_tr(160, 24, 10, 11)
    a(f"""
    L_staged:
    v_lshlrev_b32 v12, 4, v5
    v_add_u32 v12, {L_XV}, v12
    s_cmp_lg_u32 {sROLE}, 5
    s_cbranch_scc1 L_not5
    """)
    gemv(20, 16, 12)
    a(f"""
    s_lshl_b32 s52, {sID}, 8
    s_lshl_b32 s53, s3, 6
    s_add_u32 s52, s52, s53
    s_add_u32 s52, s52, {WS_MB}
    """)
    mod_publish("s52")
    a(f"""
    s_branch L_mid_done
    L_not5:
    """)
    a(f"""
    v_lshlrev_b32 v10, 2, v0
    s_mov_b32 s52, {WS_CLR}
    L_clrwait:
    """)
    spin_check()
    a(f"""
    s_sleep 8
    buffer_load_dword v13, v10, {WSR}, s52 offen sc1
    s_waitcnt vmcnt(0)
    v_cmp_ne_u32 vcc, {sTAG}, v13
    s_cbranch_vccnz L_clrwait
    s_cmp_eq_u32 {sROLE}, 2
    s_cbranch_scc1 L_mid_done
    """)
    srd(40, sX, 1280)
    a(f"""
    s_cmp_eq_u32 {sROLE}, 4
    s_cbranch_scc1 L_m4
    s_mul_i32 s52, s3, 640
    v_min_u32 v13, 39, v0
    v_lshlrev_b32 v13, 4, v13
    v_add_u32 v13, s52, v13               ; (160 w + 4p) * 4
    s_mov_b32 s53, {WS_MB + 2560}
    s_mov_b32 s54, {WS_MB + 5120}
    s_branch L_m34
    L_m4:
    s_lshl_b32 s52, {sID}, 8
    s_lshl_b32 s53, s3, 6
    s_add_u32 s52, s52, s53
    v_lshlrev_b32 v13, 4, v5
    v_add_u32 v13, s52, v13               ; (64 id + 16 w + 4 g) * 4
    s_mov_b32 s53, {WS_MB + 7680}
    s_mov_b32 s54, {WS_MB + 7680}
    L_m34:
    v_lshrrev_b32 v14, 1, v13
    s_mov_b32 s52, {WS_MB}
    buffer_load_dwordx2 v[28:29], v14, {BR}, 0 offen
    L_mbpoll:
    """)
    spin_check()
    a(f"""
    s_sleep 8
    buffer_load_dwordx4 v[16:19], v13, {WSR}, s52 offen sc1
    buffer_load_dwordx4 v[20:23], v13, {WSR}, s53 offen sc1
    buffer_load_dwordx4 v[24:27], v13, {WSR}, s54 offen sc1
    v_mov_b32 v15, 0
    s_waitcnt vmcnt(0)
    v_bitop3_b32 v15, v15, v18, {sTAG} bitop3:0xf6
    v_bitop3_b32 v15, v15, v22, {sTAG} bitop3:0xf6
    v_bitop3_b32 v15, v15, v26, {sTAG} bitop3:0xf6
    v_cmp_ne_u32 vcc, 0, v15
    s_cbranch_vccnz L_mbpoll
    """)
    unpack2(28, 44, 45); unpack2(29, 46, 47)
    unpack2(16, 48, 49); unpack2(17, 50, 51)
    unpack2(20, 52, 53); unpack2(21, 54, 55)
    unpack2(24, 56, 57); unpack2(25, 58, 59)
    for i in range(4): a(f"v_add_f32 v{56+i}, 1.0, v{56+i}")
    bf16_round2(56, 57); bf16_round2(58, 59)
    a("L_mid_done:")
    stamp(6, STAMPV_H)

    if DRY:
        a("""
        s_mov_b64 s[4:5], 0
        s_mov_b64 s[6:7], 0
        s_mov_b64 s[8:9], 0
        s_mov_b64 s[10:11], 0
        s_mov_b64 s[12:13], 0
        s_mov_b32 s14, 1
        s_mov_b64 exec, 0
        s_branch L_b5
        """)
    a("""
    L_dry_done:
    s_setprio 0
    s_mov_b64 exec, -1
    s_mov_b64 s[4:5], -1
    s_mov_b32 s6, 0x00010001
    s_mov_b32 s7, 0x00010001
    s_mov_b32 s8, -1
    s_mov_b32 s9, 0xff
    s_mov_b32 s10, 0
    s_mov_b32 s11, 0x80000000
    s_mov_b64 s[12:13], 1
    s_mov_b32 s14, 0
    """)
    sKN, sEST, sN, sR = "s76", "s77", "s78", "s79"
    a(f"""
    s_cmp_lg_u32 s3, 0
    s_cbranch_scc1 L_b5
    s_lshl_b32 s52, {sH}, 8
    s_add_u32 s52, s52, {WS_CNT}
    s_add_u32 s60, s{sWS}, s52
    s_addc_u32 s61, s{sWS+1}, 0
    s_mov_b32 {sKN}, {L_RB + 4*NSTAT}
    s_mov_b32 {sEST}, -1
    s_mov_b32 s63, {4*LA}
    v_mov_b32 v10, 0
    L_grab:
    """)
    spin_check()
    a(f"""
    s_sleep {GSL}
    ds_read_b128 v[16:19], v10 offset:{L_PROG}
    s_waitcnt lgkmcnt(0)
    v_{"min" if MINT else "max"}3_u32 v16, v16, v17, v18
    v_{"min" if MINT else "max"}_u32 v16, v16, v19
    v_readfirstlane_b32 s52, v16
    s_add_u32 s52, s52, s63
    s_cmp_lt_u32 s52, {sKN}
    s_cbranch_scc1 L_grab
    s_cmp_lg_u32 {sEST}, -1
    s_cbranch_scc1 L_grab1
    s_load_dword {sEST}, s[60:61], 0 glc
    s_waitcnt lgkmcnt(0)
    L_grab1:
    s_min_u32 s52, {sEST}, {PR}
    s_sub_u32 s52, {PR}, s52
    s_lshr_b32 s52, s52, {SH}
    s_max_u32 {sN}, s52, {NMIN}
    s_mov_b32 {sR}, {sN}
    s_atomic_add {sR}, s[60:61], 0 glc
    s_waitcnt lgkmcnt(0)
    s_min_u32 s53, {sR}, {PR}
    s_sub_u32 s52, {PR}, s53
    s_min_u32 s52, s52, {sN}
    s_mul_i32 s54, {sH}, {GPH}
    s_add_u32 s54, s54, s53
    s_lshl_b32 s54, s54, 2
    s_add_u32 s54, s54, {32*NSTAT}
    v_lshlrev_b32 v16, 2, v0
    v_add_u32 v17, s54, v16
    v_and_b32 v17, 2047, v17
    v_add_u32 v16, {sKN}, v16
    s_add_u32 s55, s53, {sN}
    s_cmp_ge_u32 s55, {PR}
    s_cselect_b32 s56, 1, 0
    v_mov_b32 v18, {END}
    v_cmp_gt_u32 vcc, s52, v0
    v_cndmask_b32 v17, v18, v17, vcc
    s_add_u32 s57, s52, s56
    v_cmp_gt_u32 vcc, s57, v0
    s_and_saveexec_b64 s[58:59], vcc
    ds_write_b32 v16, v17
    s_mov_b64 exec, -1
    s_lshl_b32 s52, s52, 2
    s_add_u32 {sKN}, {sKN}, s52
    s_mul_i32 s52, {sN}, {EM}
    s_add_u32 {sEST}, {sR}, s52
    s_cmp_ge_u32 {sEST}, {PR - JIT if JIT else 1 << 30}
    s_cselect_b32 s63, -4, s63
    s_cmp_eq_u32 s56, 0
    s_cbranch_scc1 L_grab
    s_waitcnt lgkmcnt(0)
    L_b5:
    s_setprio 3
    """)
    stamp(7, STAMPV_H)
    a("s_cmp_lg_u32 s14, 0\ns_cbranch_scc1 L_nb1\ns_barrier\nL_nb1:")
    stamp(8, STAMPV_H)
    a(f"""
    s_cmp_lg_u32 s3, 0
    s_cbranch_scc1 L_t1_done
    v_lshlrev_b32 v10, 2, v0
    v_add_u32 v10, {L_PART}, v10
    v_mov_b32 v11, {L_ML}
    ds_read_b128 v[16:19], v11
    ds_read_b128 v[20:23], v11 offset:16
    """)
    T1R = [24 + i for i in range(20)] + [14, 15, 60, 61]
    for p in range(12):
        a(f"ds_read2st64_b32 v[{T1R[2*p]}:{T1R[2*p+1]}], v10 offset0:{2*p} offset1:{2*p+1}")
    a(f"""
    s_lshl_b32 s52, s2, 10
    s_add_u32 s52, s52, {WS_PO}
    s_lshl_b32 s53, s2, 4
    s_add_u32 s53, s53, {WS_PML}
    v_lshlrev_b32 v11, 4, v0
    s_waitcnt lgkmcnt(12)
    v_min3_f32 v8, v16, v18, v20
    v_min_f32 v8, v8, v22                 ; NMmin
    v_sub_f32 v16, v8, v16
    v_sub_f32 v18, v8, v18
    v_sub_f32 v20, v8, v20
    v_sub_f32 v22, v8, v22
    v_exp_f32 v16, v16
    v_exp_f32 v18, v18
    v_exp_f32 v20, v20
    v_exp_f32 v22, v22
    v_mul_f32 v9, v16, v17
    v_fmac_f32 v9, v18, v19
    v_fmac_f32 v9, v20, v21
    v_fmac_f32 v9, v22, v23               ; l
    s_waitcnt lgkmcnt(0)
    """)
    idx = lambda w, hi, t: T1R[6 * w + 3 * hi + t]
    for w in range(4):
        for t in range(3):
            a(f"v_add_f32 v{idx(w,0,t)}, v{idx(w,0,t)}, v{idx(w,1,t)}")
    for t in range(3):
        a(f"v_mul_f32 v{17+2*t}, v16, v{idx(0,0,t)}")
    for w in range(1, 4):
        for t in range(3):
            a(f"v_fmac_f32 v{17+2*t}, v{16+2*w}, v{idx(w,0,t)}")
    a(f"""
    v_mov_b32 v24, v17
    v_mov_b32 v25, v19
    v_mov_b32 v26, v21
    v_mov_b32 v27, {sTAG}
    v_mov_b32 v28, v8
    v_mov_b32 v29, v9
    v_mov_b32 v30, {sTAG}
    v_mov_b32 v31, {sTAG}
    buffer_store_dwordx4 v[24:27], v11, {WSR}, s52 offen sc1
    s_mov_b64 exec, s[12:13]
    buffer_store_dwordx4 v[28:31], v11, {WSR}, s53 offen sc1
    s_mov_b64 exec, s[4:5]
    L_t1_done:
    """)
    stamp(9, STAMPV_H)
    a(f"""
    s_cmp_eq_u32 {sROLE}, 3
    s_cbranch_scc1 L_t3
    s_cmp_eq_u32 {sROLE}, 4
    s_cbranch_scc1 L_t4
    s_cmp_eq_u32 {sROLE}, 2
    s_cbranch_scc0 L_hend
    """)
    a(f"""
    s_lshl_b32 s52, {sG}, 2
    s_add_u32 s52, s52, s3
    s_lshl_b32 s53, s52, 13
    s_add_u32 s53, s53, {WS_PO}
    s_lshl_b32 s54, s52, 7
    s_add_u32 s54, s54, {WS_PML}
    v_lshlrev_b32 v10, 4, v0
    v_lshlrev_b32 v11, 4, v4
    s_add_u32 s55, s53, 4096
    L_t2gate:
    """)
    spin_check()
    a(f"""
    buffer_load_dwordx4 v[48:51], v11, {WSR}, s54 offen sc1
    s_waitcnt vmcnt(0)
    v_cmp_ne_u32 s[78:79], {sTAG}, v50
    s_and_b32 s56, s78, 0xff
    s_bcnt1_i32_b32 s56, s56
    s_cmp_gt_u32 s56, {T2G}
    s_cbranch_scc1 L_t2gate
    """)
    for i in range(8): a(f"s_mov_b64 s[{80+2*i}:{81+2*i}], s[4:5]")
    a("L_t2poll:")
    stamp(14, STAMPV_H)
    spin_check()
    if SIM2:
        a(f"buffer_load_dwordx4 v[48:51], v11, {WSR}, s54 offen sc1")
        for i in range(8):
            a(f"buffer_load_dwordx4 v[{16+4*i}:{19+4*i}], v10, {WSR}, {'s53' if i < 4 else 's55'} offen offset:{1024*(i%4)} sc1")
        a(f"s_waitcnt vmcnt(8)\nv_xor_b32 v14, {sTAG}, v50")
        for i in range(8):
            a(f"s_waitcnt vmcnt({7-i})\nv_bitop3_b32 v14, v14, v{19+4*i}, {sTAG} bitop3:0xf6")
        a("v_cmp_ne_u32 vcc, 0, v14\ns_cbranch_vccnz L_t2poll")
    else:
        for i in range(8):
            lz = a.lab("L_z")
            a(f"s_mov_b64 exec, s[{80+2*i}:{81+2*i}]")
            if SKIPZ: a(f"s_cbranch_execz {lz}")
            a(f"buffer_load_dwordx4 v[{16+4*i}:{19+4*i}], v10, {WSR}, {'s53' if i < 4 else 's55'} offen offset:{1024*(i%4)} sc1")
            a(f"{lz}:")
        a(f"""
        s_mov_b64 exec, s[78:79]
        buffer_load_dwordx4 v[48:51], v11, {WSR}, s54 offen sc1
        s_mov_b64 exec, s[4:5]
        s_waitcnt vmcnt(0)
        v_cmp_ne_u32 s[78:79], {sTAG}, v50
        """)
        for i in range(8): a(f"v_cmp_ne_u32 s[{80+2*i}:{81+2*i}], {sTAG}, v{19+4*i}")
        a("s_or_b64 s[56:57], s[78:79], s[80:81]")
        for i in range(1, 8): a(f"s_or_b64 s[56:57], s[56:57], s[{80+2*i}:{81+2*i}]")
        a("s_cbranch_scc1 L_t2poll")
    stamp(10, STAMPV_H)
    a(f"""
    v_min_f32_dpp v52, v48, v48 row_ror:4 row_mask:0xf bank_mask:0xf
    v_min_f32_dpp v52, v52, v52 row_ror:2 row_mask:0xf bank_mask:0xf
    v_min_f32_dpp v52, v52, v52 row_ror:1 row_mask:0xf bank_mask:0xf
    v_sub_f32 v52, v52, v48
    v_exp_f32 v52, v52
    v_mul_f32 v53, v52, v49
    v_add_f32_dpp v53, v53, v53 row_ror:4 row_mask:0xf bank_mask:0xf
    v_add_f32_dpp v53, v53, v53 row_ror:2 row_mask:0xf bank_mask:0xf
    v_add_f32_dpp v53, v53, v53 row_ror:1 row_mask:0xf bank_mask:0xf
    v_rcp_f32 v53, v53
    v_mul_f32 v52, v52, v53
    """)
    for i in range(8): a(f"v_readlane_b32 s{80+i}, v52, {i}")
    a("s_mul_i32 s52, s3, 384\nv_lshl_add_u32 v11, v0, 1, s52")
    for t in range(3): a(f"v_mul_f32 v{54+t}, s80, v{16+t}")
    for i in range(1, 8):
        for t in range(3): a(f"v_fmac_f32 v{54+t}, s{80+i}, v{16+4*i+t}")
    a(f"""
    v_cvt_pk_bf16_f32 v54, v54, v55
    v_cvt_pk_bf16_f32 v56, v56, v56
    ds_write_b16 v11, v54 offset:{L_XV}
    ds_write_b16_d16_hi v11, v54 offset:{L_XV+128}
    ds_write_b16 v11, v56 offset:{L_XV+256}
    s_mul_i32 s52, {sG}, 2560
    s_lshl_b32 s53, {sK5}, 8
    s_add_u32 s52, s52, s53
    s_lshl_b32 s53, s3, 6
    s_add_u32 s52, s52, s53
    s_add_u32 s52, s52, {WS_AP}
    v_lshlrev_b32 v10, 4, v5
    s_waitcnt lgkmcnt(0)
    s_cmp_lg_u32 s14, 0
    s_cbranch_scc1 L_nb2
    s_barrier
    L_nb2:
    """)
    gemv(24, 16, 12)
    for i in range(4): a(f"v_min_u32 v{16+i}, -2, v{16+i}")
    a(f"""
    s_mov_b64 exec, s[6:7]
    buffer_store_dwordx4 v[16:19], v10, {WSR}, s52 offen sc1
    """)
    for r in range(1, RAP):
        a(f"s_add_u32 s52, s52, 20480\nbuffer_store_dwordx4 v[16:19], v10, {WSR}, s52 offen sc1")
    stamp(11, STAMPV_H)
    a("s_branch L_hend")

    def ap_poll(tag):
        rr = lambda i: 16 + 4 * i if i < 7 else 8
        a(f"s_sub_u32 s56, {sS}, 3\ns_min_u32 s56, s56, {RAP-1}\ns_mul_i32 s56, s56, 20480")
        for i in range(4): a(f"s_add_u32 s{52+i}, s56, {WS_AP + 5120*i}")
        for i in range(8): a(f"s_mov_b64 s[{80+2*i}:{81+2*i}], s[4:5]")
        if GATE3 == 1 and tag == 3:
            a(f"""
            s_lshl_b32 s56, s3, 10
            s_add_u32 s56, s56, {WS_PML}
            v_lshlrev_b32 v14, 4, v0
            L_gate3:
            """)
            spin_check()
            a(f"""
            s_sleep 4
            buffer_load_dword v15, v14, {WSR}, s56 offen offset:8 sc1
            s_waitcnt vmcnt(0)
            v_cmp_ne_u32 vcc, {sTAG}, v15
            s_cbranch_vccnz L_gate3
            """)
        if GATE3 == 2:
            a(f"""
            s_and_b32 s56, {sID}, 3
            s_mul_i32 s56, s56, 2560
            s_add_u32 s56, s56, s52
            s_add_u32 s57, s56, 10240
            L_gate{tag}:
            """)
            spin_check()
            a(f"""
            s_sleep 4
            buffer_load_dword v14, v13, {WSR}, s56 offen sc1
            buffer_load_dword v15, v13, {WSR}, s57 offen sc1
            s_waitcnt vmcnt(0)
            v_cmp_eq_u32 s[58:59], -1, v14
            v_cmp_eq_u32 vcc, -1, v15
            s_cmp_eq_u64 s[58:59], 0
            s_cbranch_scc1 {"L_lp3a" if (LP3 and tag == 3) else f"L_ap{tag}"}
            s_cbranch_vccnz L_gate{tag}
            """)
        if LP3 and tag == 3:
            a(f"""
            L_lp3a:
            v_min_u32 v14, 39, v0
            v_and_b32 v15, 7, v14
            v_mul_u32_u24 v15, 2560, v15
            v_lshrrev_b32 v14, 3, v14
            v_lshl_add_u32 v14, v14, 7, v15
            s_mul_i32 s56, s3, 640
            s_add_u32 s56, s56, s52
            L_lp3:
            """)
            spin_check()
            a(f"""
            buffer_load_dword v15, v14, {WSR}, s56 offen sc1
            buffer_load_dword v60, v14, {WSR}, s56 offen offset:64 sc1
            s_waitcnt vmcnt(0)
            v_max_u32 v15, v15, v60
            v_cmp_eq_u32 vcc, -1, v15
            s_cbranch_vccnz L_lp3
            """)
        a(f"L_ap{tag}:")
        stamp(14, STAMPV_H)
        spin_check()
        if SIM3:
            for i in range(8):
                a(f"buffer_load_dwordx4 v[{rr(i)}:{rr(i)+3}], v13, {WSR}, s{52+i//2} offen offset:{2560*(i%2)} sc1")
            a(f"""
            s_waitcnt vmcnt(5)
            v_max3_u32 v14, v{rr(0)}, v{rr(1)}, v{rr(2)}
            s_waitcnt vmcnt(3)
            v_max3_u32 v14, v14, v{rr(3)}, v{rr(4)}
            s_waitcnt vmcnt(1)
            v_max3_u32 v14, v14, v{rr(5)}, v{rr(6)}
            s_waitcnt vmcnt(0)
            v_max_u32 v14, v14, v{rr(7)}
            v_cmp_eq_u32 vcc, -1, v14
            s_cbranch_vccnz L_ap{tag}
            """)
        else:
            for i in range(8):
                lz = a.lab("L_z")
                a(f"s_mov_b64 exec, s[{80+2*i}:{81+2*i}]")
                if SKIPZ: a(f"s_cbranch_execz {lz}")
                a(f"buffer_load_dwordx4 v[{rr(i)}:{rr(i)+3}], v13, {WSR}, s{52+i//2} offen offset:{2560*(i%2)} sc1")
                a(f"{lz}:")
            a("s_mov_b64 exec, s[4:5]\ns_waitcnt vmcnt(0)")
            for i in range(8): a(f"v_cmp_eq_u32 s[{80+2*i}:{81+2*i}], -1, v{rr(i)}")
            a("s_or_b64 s[56:57], s[80:81], s[82:83]")
            for i in range(2, 8): a(f"s_or_b64 s[56:57], s[56:57], s[{80+2*i}:{81+2*i}]")
            a(f"s_cbranch_scc1 L_ap{tag}")
        stamp(15, STAMPV_H)
        for (x, y) in ((0, 1), (2, 3), (4, 5), (6, 7), (0, 2), (4, 6), (0, 4)):
            for k in (0, 2): a(f"v_pk_add_f32 v[{rr(x)+k}:{rr(x)+k+1}], v[{rr(x)+k}:{rr(x)+k+1}], v[{rr(y)+k}:{rr(y)+k+1}]")
        bf16_round2(16, 17); bf16_round2(18, 19)
        for k in (0, 2): a(f"v_pk_mul_f32 v[{16+k}:{17+k}], v[{48+k}:{49+k}], v[{16+k}:{17+k}]")
        bf16_round2(16, 17); bf16_round2(18, 19)
        for k in (0, 2): a(f"v_pk_add_f32 v[{16+k}:{17+k}], v[{44+k}:{45+k}], v[{16+k}:{17+k}]")
        bf16_round2(16, 17); bf16_round2(18, 19)

    a("L_t3:")
    ap_poll(3)
    stamp(10, STAMPV_H)
    a(f"""
    v_readfirstlane_b32 s58, v16
    v_cmp_gt_u32 vcc, 40, v0
    v_mov_b32 v26, 0
    """)
    for k in range(4):
        a(f"v_subrev_f32 v{20+k}, s58, v{16+k}")
    a("""
    v_add_f32 v24, v20, v21
    v_mul_f32 v25, v20, v20
    v_add_f32 v24, v24, v22
    v_fmac_f32 v25, v21, v21
    v_add_f32 v24, v24, v23
    v_fmac_f32 v25, v22, v22
    v_fmac_f32 v25, v23, v23
    v_cndmask_b32 v24, v26, v24, vcc
    v_cndmask_b32 v25, v26, v25, vcc
    """)
    reduce64([24, 25])
    a(f"""
    v_mul_f32 v26, 0x3bcccccd, v24        ; S1/160
    v_fma_f32 v25, -v26, v24, v25         ; M2 = S2 - S1^2/160
    v_add_f32 v24, s58, v26               ; wave mean
    s_lshl_b32 s52, s3, 3
    v_mov_b32 v27, s52
    s_mov_b64 exec, s[10:11]
    ds_write_b64 v27, v[24:25] offset:{L_STAT}
    s_mov_b64 exec, s[4:5]
    v_mov_b32 v27, {L_STAT}
    s_waitcnt lgkmcnt(0)
    s_cmp_lg_u32 s14, 0
    s_cbranch_scc1 L_nb3
    s_barrier
    L_nb3:
    ds_read_b128 v[28:31], v27
    ds_read_b128 v[32:35], v27 offset:16
    v_lshrrev_b32 v14, 1, v13
    s_waitcnt lgkmcnt(0)
    v_add_f32 v24, v28, v30
    v_add_f32 v25, v32, v34
    v_add_f32 v24, v24, v25
    v_mul_f32 v24, 0.25, v24              ; mean
    v_add_f32 v25, v29, v31
    v_add_f32 v26, v33, v35
    v_add_f32 v25, v25, v26               ; sum M2
    v_sub_f32 v28, v28, v24
    v_sub_f32 v30, v30, v24
    v_sub_f32 v32, v32, v24
    v_sub_f32 v34, v34, v24
    v_mul_f32 v26, v28, v28
    v_fmac_f32 v26, v30, v30
    v_fmac_f32 v26, v32, v32
    v_fmac_f32 v26, v34, v34
    v_mul_f32 v25, 0x3acccccd, v25        ; /640
    v_fmac_f32 v25, 0.25, v26             ; + 160/640 * sum (mean_w - mean)^2
    """.replace("0.25,", "0x3e800000,"))
    bf16_round2(24, 25)
    a("v_add_f32 v25, 0x3727c5ac, v25")
    bf16_round1(25)
    a("v_sqrt_f32 v25, v25")
    bf16_round1(25)
    a("v_rcp_f32 v26, v25")
    for k in range(4): a(f"v_sub_f32 v{16+k}, v{16+k}, v24")
    bf16_round2(16, 17); bf16_round2(18, 19)
    for k in range(4): div_rn(20 + k, 16 + k, 25, 26, 28 + k)
    bf16_round2(20, 21); bf16_round2(22, 23)
    for k in range(4): a(f"v_mul_f32 v{20+k}, v{20+k}, v{56+k}")
    bf16_round2(20, 21); bf16_round2(22, 23)
    for k in range(4): a(f"v_add_f32 v{20+k}, v{20+k}, v{52+k}")
    a(f"""
    v_cvt_pk_bf16_f32 v20, v20, v21
    v_cvt_pk_bf16_f32 v21, v22, v23
    s_mov_b64 exec, s[8:9]
    ds_write_b64 v14, v[20:21] offset:{L_XV}
    s_mov_b64 exec, s[4:5]
    s_lshl_b32 s52, {sID}, 7
    s_lshl_b32 s53, s3, 5
    s_add_u32 s52, s52, s53
    s_add_u32 s52, s52, {WS_GU}
    v_lshlrev_b32 v10, 3, v5
    v_and_b32 v8, 3, v0
    v_cmp_eq_u32 s[58:59], 1, v8
    v_cmp_eq_u32 s[60:61], 2, v8
    v_cmp_eq_u32 s[62:63], 3, v8
    s_waitcnt lgkmcnt(0)
    s_cmp_lg_u32 s14, 0
    s_cbranch_scc1 L_nb4
    s_barrier
    L_nb4:
    """)
    gemv(20, 16, 12)
    a(f"""
    s_cmp_ge_u32 {sID}, 24
    s_cbranch_scc1 L_t3up
    v_cndmask_b32 v16, v16, v17, s[58:59]
    v_cndmask_b32 v16, v16, v18, s[60:61]
    v_cndmask_b32 v16, v16, v19, s[62:63]
    """)
    bf16_round1(16)
    import struct
    f2u = lambda x: struct.unpack('<I', struct.pack('<f', x))[0]
    c1 = -2.0 * 0.7978845608028654 * 1.4426950408889634
    a(f"""
    v_mul_f32 v17, v16, v16
    v_mov_b32 v18, 0x{f2u(c1):08x}
    v_fmac_f32 v18, 0x{f2u(c1*0.044715):08x}, v17
    v_mul_f32 v17, v16, v18
    v_exp_f32 v17, v17
    v_add_f32 v17, 1.0, v17
    v_rcp_f32 v17, v17
    v_mul_f32 v16, v16, v17
    v_mov_b32_dpp v17, v16 quad_perm:[1,1,1,1] row_mask:0xf bank_mask:0xf
    v_mov_b32_dpp v18, v16 quad_perm:[2,2,2,2] row_mask:0xf bank_mask:0xf
    v_mov_b32_dpp v19, v16 quad_perm:[3,3,3,3] row_mask:0xf bank_mask:0xf
    L_t3up:
    v_cvt_pk_bf16_f32 v16, v16, v17
    v_cvt_pk_bf16_f32 v17, v18, v19
    v_min_u32 v16, -2, v16
    v_min_u32 v17, -2, v17
    s_mov_b64 exec, s[6:7]
    buffer_store_dwordx2 v[16:17], v10, {WSR}, s52 offen sc1
    """)
    stamp(11, STAMPV_H)
    a("s_branch L_hend")
    a("L_t4:")
    ap_poll(4)
    stamp(10, STAMPV_H)
    for k in range(4): a(f"v_mov_b32 v{44+k}, v{16+k}")
    srd(44, sOUT, 1280)
    a(f"""
    s_lshl_b32 s52, s3, 10
    v_lshl_add_u32 v10, v0, 4, s52
    s_mov_b32 s53, {WS_GU}
    s_mov_b32 s54, {WS_GU + 3072}
    v_lshrrev_b32 v14, 1, v13
    s_cmp_eq_u32 s3, 3
    s_cbranch_scc1 L_t4b
    L_gupoll:
    """)
    stamp(16, STAMPV_H)
    spin_check()
    a(f"""
    buffer_load_dwordx4 v[16:19], v10, {WSR}, s53 offen sc1
    buffer_load_dwordx4 v[20:23], v10, {WSR}, s54 offen sc1
    s_waitcnt vmcnt(0)
    v_max3_u32 v24, v16, v18, v20
    v_max_u32 v24, v24, v22
    v_cmp_eq_u32 vcc, -1, v24
    s_cbranch_vccnz L_gupoll
    """)
    stamp(11, STAMPV_H)
    for k in range(4):
        unpack2(16 + k, 24, 25); unpack2(20 + k, 26, 27)
        a(f"v_mul_f32 v24, v24, v26\nv_mul_f32 v25, v25, v27\nv_cvt_pk_bf16_f32 v{16+k}, v24, v25")
    a(f"""
    ds_write_b128 v10, v[16:19] offset:{L_XV}
    s_waitcnt lgkmcnt(0)
    L_t4b:
    s_cmp_lg_u32 s14, 0
    s_cbranch_scc1 L_nb5
    s_barrier
    L_nb5:
    """)
    gemv(48, 16, 12, tmp=20, ntmp=6)
    bf16_round2(16, 17); bf16_round2(18, 19)
    for k in range(4): a(f"v_mul_f32 v{16+k}, v{52+k}, v{16+k}")
    bf16_round2(16, 17); bf16_round2(18, 19)
    for k in range(4): a(f"v_add_f32 v{16+k}, v{44+k}, v{16+k}")
    if PERT:
        kind, val = PERT
        if kind == "mul":
            for k in range(4): a(f"v_mul_f32 v{16+k}, 0x{f2u(val):08x}, v{16+k}")
        elif kind == "add1":
            a(f"s_cmp_lg_u32 s3, 0\ns_cbranch_scc1 L_np\nv_mov_b32 v20, 0\nv_mov_b32 v21, 0x{f2u(val):08x}\nv_cmp_gt_u32 vcc, 16, v0\nv_cndmask_b32 v20, v20, v21, vcc\nv_add_f32 v16, v16, v20\nL_np:")
        elif kind == "addall":
            for k in range(4): a(f"v_add_f32 v{16+k}, 0x{f2u(val):08x}, v{16+k}")
    a(f"""
    v_cvt_pk_bf16_f32 v16, v16, v17
    v_cvt_pk_bf16_f32 v17, v18, v19
    s_mov_b64 exec, s[6:7]
    buffer_store_dwordx2 v[16:17], v14, {CR}, 0 offen
    """)
    dbgstamp(4)
    a(f"""
    s_or_b32 s52, {sID}, s3
    s_cmp_lg_u32 s52, 0
    s_cbranch_scc1 L_hend
    s_add_u32 s52, {sE}, 1
    v_mov_b32 v18, s52
    v_mov_b32 v19, 0
    s_mov_b64 exec, s[12:13]
    buffer_store_dword v18, v19, {WSR}, 0 offen
    L_hend:
    """)
    a("s_cmp_lg_u32 s14, 0\ns_cbranch_scc1 L_dry_done")
    stamp(12, STAMPV_H)
    stamp_dump(STAMPV_H)
    a("s_endpgm")

    RING = 56
    D0, D1, ACC, Q = 20, 24, 28, 40
    sW, sOFF, sIDX, sEND, sV_ = "s52", "s53", "s54", "s55", "s56"
    a("L_stream:")
    if prof: a(f"v_mov_b32 v{STAMPV_S}, 0\nv_mov_b32 v53, 0\nv_mov_b32 v54, 0\ns_mov_b32 s63, 0")
    stamp(0, STAMPV_S)
    a(f"""
    s_sub_u32 {sW}, s3, 4
    v_bfe_u32 v1, v0, 1, 3
    v_mul_u32_u24 v1, 384, v1
    v_and_b32 v2, 1, v0
    v_lshl_add_u32 v1, v2, 6, v1
    v_lshrrev_b32 v12, 4, v0
    v_lshl_add_u32 v1, v12, 4, v1
    v_add_u32 v2, 3072, v1
    v_lshrrev_b32 v3, 3, v0
    {"v_bfe_u32 v14, v0, 3, 1" if 'r8' in XP else ""}
    {"v_lshl_add_u32 v3, v14, 2, v12" if 'r8' in XP else ""}
    v_mul_u32_u24 v3, 384, v3
    v_and_b32 v13, 7, v0
    v_lshl_add_u32 v3, v13, 4, v3
    v_add_u32 v4, 3072, v3
    s_mul_i32 s57, {sH}, {HEADBYTES}
    s_mul_hi_u32 s58, {sH}, {HEADBYTES}
    s_mul_i32 s64, {sH}, {GPH}
    s_add_u32 s64, s64, {sS}
    s_lshl_b32 s64, s64, 2
    s_add_u32 s64, s64, {sW}
    s_and_b32 s64, s64, 2047
    s_mul_i32 {sOFF}, s64, 6144
    s_mov_b32 s38, {HEADBYTES}
    s_mov_b32 s39, 0x20000
    s_mov_b32 s42, {HEADBYTES}
    s_mov_b32 s43, 0x20000
    s_waitcnt lgkmcnt(0)
    s_add_u32 s36, s{sK}, s57
    s_addc_u32 s37, s{sK+1}, s58
    s_add_u32 s40, s{sV}, s57
    s_addc_u32 s41, s{sV+1}, s58
    """)
    if dbgt:
        a("s_cmp_lg_u32 s3, 4\ns_cbranch_scc1 L_nd0")
        dbgstamp(0, True); dbgstamp(1)
        a("L_nd0:")
    if EARLY: a("s_cmp_eq_u32 s62, 0\ns_cbranch_scc1 L_nob0\ns_barrier\nL_nob0:")
    else: a("s_barrier")

    def kloads(slot):
        r0 = RING + 48 * slot
        for j in range(6):
            a(f"buffer_load_dwordx4 v[{r0+4*j}:{r0+4*j+3}], v{1+j//3}, {AR}, {sOFF} offen offset:{128*(j%3)} nt")

    def vloads(slot):
        r0 = RING + 48 * slot + 24
        for j in range(6):
            a(f"buffer_load_dwordx4 v[{r0+4*j}:{r0+4*j+3}], v{3+j//3}, {BR}, {sOFF} offen offset:{128*(j%3)} nt")
    grp = 0
    def pace():
        nonlocal grp
        if 0 < grp <= SLOW: a("s_waitcnt vmcnt(0)")
        elif 6 * grp > PACE: a(f"s_waitcnt vmcnt({PACE})")
        grp += 1
    if DLY: a(f"s_sleep {DLY}")
    def flag_wait(tag):
        a(f"v_mov_b32 v17, {L_FL0}\nL_fw{tag}:")
        spin_check()
        a(f"""
        s_sleep 1
        ds_read_b128 v[20:23], v17
        s_waitcnt lgkmcnt(0)
        v_and_b32 v20, v20, v21
        v_and_b32 v22, v22, v23
        v_and_b32 v20, v20, v22
        v_cmp_eq_u32 vcc, 0, v20
        s_cbranch_vccnz L_fw{tag}
        """)
    for s in range(R):
        if s == HOLD:
            a("s_cmp_eq_u32 s62, 0\ns_cbranch_scc1 L_nohold" if HOLDM else "s_cmp_lg_u32 s62, 2\ns_cbranch_scc1 L_nohold")
            flag_wait(0)
            a("L_nohold:")
        pace(); kloads(s); pace(); vloads(s)
        if EARLY and s == 0: a("s_cmp_lg_u32 s62, 0\ns_cbranch_scc1 L_nob1\ns_barrier\nL_nob1:")
        stamp(8 + s, STAMPV_S)
        a(f"s_add_u32 s64, s64, 32\ns_and_b32 s64, s64, 2047\ns_mul_i32 {sOFF}, s64, 6144")
    a(f"""
    s_mul_i32 s59, {sW}, {NL*12288}
    s_add_u32 s59, s59, {L_STG}
    s_mov_b32 {sIDX}, {L_RB + 4*NPRE}
    """)
    if NL: flag_wait(1)
    for n in range(NL):
        for j in range(12):
            if j % 6 == 0: pace()
            off = 128 * (j % 3)
            a(f"s_add_u32 m0, s59, {n*12288 + j*1024 - off}")
            if j < 6: a(f"buffer_load_dwordx4 v{1+j//3}, {AR}, {sOFF} offen offset:{off} nt lds")
            else: a(f"buffer_load_dwordx4 v{3+(j-6)//3}, {BR}, {sOFF} offen offset:{off} nt lds")
        stamp(12 + n, STAMPV_S)
        a(f"s_add_u32 s64, s64, 32\ns_and_b32 s64, s64, 2047\ns_mul_i32 {sOFF}, s64, 6144")
    stamp(1, STAMPV_S)
    a(f"""
    v_and_b32 v14, 1, v0
    v_lshlrev_b32 v14, 4, v14
    v_mov_b32 v15, 0xffff
    v_lshlrev_b32 v14, v14, v15           ; 0xffff << 16*(l&1)
    v_lshrrev_b32 v13, 1, v13             ; (l&7)>>1
    v_mov_b32 v15, 0
    """)
    for r in range(4):
        a(f"v_cmp_eq_u32 vcc, {r}, v13\nv_cndmask_b32 v{5+r}, v15, v14, vcc")
    a(f"""
    v_mov_b32 v9, 0xff800000
    v_mov_b32 v10, 0x7f800000
    v_mov_b32 v11, 0
    """)
    for i in range(12): a(f"v_mov_b32 v{ACC+i}, 0")
    a(f"""
    s_lshl_b32 s57, {sW}, 2
    v_mov_b32 v18, s57
    s_mov_b32 s60, 1
    s_mov_b32 {sEND}, 0
    v_mov_b32 v17, {sIDX}
    v_bfe_u32 v13, v0, 3, 1
    v_lshlrev_b32 v13, 6, v13
    v_lshl_add_u32 v13, v12, 4, v13
    ds_read_b32 v16, v17
    L_qwait:
    """)
    spin_check()
    a(f"""
    s_sleep 1
    ds_read_b128 v[{Q}:{Q+3}], v13 offset:{L_QV}
    ds_read_b128 v[{Q+4}:{Q+7}], v13 offset:{L_QV+128}
    ds_read_b128 v[{Q+8}:{Q+11}], v13 offset:{L_QV+256}
    s_waitcnt lgkmcnt(0)
    v_max3_u32 v14, v{Q}, v{Q+1}, v{Q+2}
    v_max3_u32 v15, v{Q+3}, v{Q+4}, v{Q+5}
    v_max3_u32 v14, v14, v{Q+6}, v{Q+7}
    v_max3_u32 v15, v15, v{Q+8}, v{Q+9}
    v_max3_u32 v14, v14, v{Q+10}, v{Q+11}
    v_max_u32 v14, v14, v15
    v_cmp_eq_u32 vcc, -1, v14
    s_cbranch_vccnz L_qwait
    """)
    stamp(2, STAMPV_S)
    W = 12 * (D - 1) + 6

    def qk(slot):
        if 'nomf' in XP: return
        k0 = RING + 48 * slot
        for t in range(3):
            for u in range(2):
                d = D0 if u == 0 else D1
                c = "0" if t == 0 else f"v[{d}:{d+3}]"
                kr = k0 + 12 * u + 4 * t
                a(f"v_mfma_f32_16x16x32_bf16 v[{d}:{d+3}], v[{kr}:{kr+3}], v[{Q+4*t}:{Q+4*t+3}], {c}")

    def softmax():
        if 'nosm' in XP: return
        nr = a.lab("L_nr")
        a(f"""
        v_add_f32_dpp v12, v{D0+1}, v{D0} row_ror:8 row_mask:0xf bank_mask:0x3
        v_add_f32_dpp v13, v{D1+1}, v{D1} row_ror:8 row_mask:0xf bank_mask:0x3
        v_add_f32_dpp v12, v{D0+2}, v{D0+3} row_ror:8 row_mask:0xf bank_mask:0xc
        v_add_f32_dpp v13, v{D1+2}, v{D1+3} row_ror:8 row_mask:0xf bank_mask:0xc
        """)
        bf16_round2(12, 13)
        a(f"v_mul_f32 v12, 0x{SCALE:08x}, v12\nv_mul_f32 v13, 0x{SCALE:08x}, v13")
        bf16_round2(12, 13)
        a(f"""
        v_max_f32 v15, v12, v13
        v_cmp_gt_f32 vcc, v15, v9
        s_cbranch_vccz {nr}
        s_call_b64 s[66:67], L_rare
        {nr}:
        v_fmamk_f32 v12, v12, 0x{LOG2E:08x}, v10
        v_fmamk_f32 v13, v13, 0x{LOG2E:08x}, v10
        v_exp_f32 v12, v12
        v_exp_f32 v13, v13
        v_add_f32 v11, v11, v12
        v_cvt_pk_bf16_f32 v14, v12, v12
        v_cvt_pk_bf16_f32 v15, v13, v13
        v_add_f32 v11, v11, v13
        """)
        for r in range(4): a(f"v_and_b32 v{D0+r}, v14, v{5+r}")
        for r in range(4): a(f"v_and_b32 v{D1+r}, v15, v{5+r}")

    def pv(slot):
        if 'nomf' in XP: return
        v0 = RING + 48 * slot + 24
        for u in range(2):
            for t in range(3):
                d = D0 if u == 0 else D1
                vr = v0 + 12 * u + 4 * t
                a(f"v_mfma_f32_16x16x32_bf16 v[{ACC+4*t}:{ACC+4*t+3}], v[{d}:{d+3}], v[{vr}:{vr+3}], v[{ACC+4*t}:{ACC+4*t+3}]")

    def prog_stamp():
        if prof == 1:
            pl = a.lab("L_pg")
            a(f"""
            s_and_b32 m0, s63, 63
            s_cmp_ge_u32 s63, 64
            s_cbranch_scc1 {pl}a
            v_writelane_b32 v53, s98, m0
            s_branch {pl}b
            {pl}a:
            v_writelane_b32 v54, s98, m0
            {pl}b:
            s_add_u32 s63, s63, 1
            """)

    def rb_next(s):
        a(f"""
        v_readfirstlane_b32 {sV_}, v16
        s_cmp_eq_u32 {sV_}, -1
        s_cbranch_scc1 L_rbw{s}
        L_rbok{s}:
        s_add_u32 s57, {sV_}, {sW}
        s_mul_i32 s57, s57, 6144
        s_cmp_eq_u32 {sV_}, {END}
        s_cselect_b32 {sOFF}, 0, s57
        s_cselect_b32 s38, 0, s38
        s_cselect_b32 s42, 0, s42
        s_cselect_b32 s57, 0, 4
        s_addc_u32 {sEND}, {sEND}, 0
        s_add_u32 {sIDX}, {sIDX}, s57
        v_mov_b32 v17, {sIDX}
        """)

    a("L_loop:")
    for s in range(D):
        if H3:
            assert D == 2
            a("s_waitcnt vmcnt(12)")
            qk(s)
            if prof == 1: a("s_memrealtime s[98:99]")
            if s == 0: a("s_cmp_lg_u32 s60, 0\ns_cbranch_scc1 L_skipv")
            vloads(s ^ 1)
            if s == 0: a("L_skipv:")
            softmax()
            a("s_waitcnt vmcnt(12)")
            pv(s)
            a(f"s_cmp_lg_u32 {sEND}, 0\ns_cbranch_scc1 L_sdone\ns_waitcnt lgkmcnt(0)")
            prog_stamp()
            rb_next(s)
            kloads(s)
            a("ds_read_b32 v16, v17\nds_write_b32 v18, v17")
            continue
        a(f"s_waitcnt vmcnt({W})")
        qk(s)
        if prof == 1: a("s_memrealtime s[98:99]")
        a("s_waitcnt lgkmcnt(0)")
        prog_stamp()
        rb_next(s)
        if not LATEK: kloads(s)
        a("ds_read_b32 v16, v17\nds_write_b32 v18, v17")
        softmax()
        a(f"s_waitcnt vmcnt({W-6 if LATEK else W})")
        pv(s)
        a(f"s_cmp_eq_u32 {sEND}, {D}\ns_cbranch_scc1 L_sdone")
        if LATEK: kloads(s)
        vloads(s)
    a("s_cmp_eq_u32 s60, 0\ns_cbranch_scc1 L_loop")
    a(f"s_waitcnt vmcnt({18 if H3 else 12*D})")
    for s in range(D, 3):
        qk(s); softmax(); pv(s)
    a(f"""
    s_mov_b32 s60, {NL}
    v_lshlrev_b32 v52, 4, v0
    v_add_u32 v52, s59, v52
    L_det:
    """)
    qk(3); softmax(); pv(3)
    if NL:
        a("s_cmp_eq_u32 s60, 0\ns_cbranch_scc1 L_detx")
        for j in range(12):
            a(f"ds_read_b128 v[{RING+144+4*j}:{RING+144+4*j+3}], v52 offset:{1024*j}")
        a(f"""
        v_add_u32 v52, 12288, v52
        s_sub_u32 s60, s60, 1
        s_waitcnt lgkmcnt(0)
        s_branch L_det
        L_detx:
        v_mov_b32 v52, 1
        ds_write_b32 v18, v52 offset:{L_FREE}
        """)
    a("s_branch L_loop")
    for s in range(D):
        if JIT: a(f"L_rbw{s}:\nv_add_u32 v14, 4, v17\nds_write_b32 v18, v14\nL_rbv{s}:")
        else: a(f"L_rbw{s}:\nL_rbv{s}:")
        spin_check()
        a(f"""
        ds_read_b32 v16, v17
        s_waitcnt lgkmcnt(0)
        v_readfirstlane_b32 {sV_}, v16
        s_cmp_eq_u32 {sV_}, -1
        s_cbranch_scc1 L_rbv{s}
        s_branch L_rbok{s}
        """)
    a(f"""
    L_rare:
    v_max_f32_dpp v15, v15, v15 row_ror:8 row_mask:0xf bank_mask:0xf
    v_max_f32_dpp v15, v15, v15 row_bcast:15 row_mask:0xa bank_mask:0xf
    v_max_f32_dpp v15, v15, v15 row_bcast:31 row_mask:0xc bank_mask:0xf
    v_readlane_b32 s57, v15, 63
    v_mov_b32 v9, s57
    v_mul_f32 v15, 0x{0x80000000 | LOG2E:08x}, v9
    v_sub_f32 v14, v15, v10
    v_exp_f32 v14, v14
    v_mov_b32 v10, v15
    v_mul_f32 v11, v11, v14
    """)
    for i in range(12): a(f"v_mul_f32 v{ACC+i}, v{ACC+i}, v14")
    a("s_setpc_b64 s[66:67]")
    a("L_sdone:")
    stamp(3, STAMPV_S)
    if dbgt:
        a("s_cmp_lg_u32 s3, 4\ns_cbranch_scc1 L_nd1")
        dbgstamp(2, True); dbgstamp(3)
        a("L_nd1:")
    a(f"""
    v_add_f32_dpp v11, v11, v11 row_ror:8 row_mask:0xf bank_mask:0xf
    v_and_b32 v12, 7, v0
    v_lshlrev_b32 v12, 5, v12
    v_add_f32_dpp v11, v11, v11 row_bcast:15 row_mask:0xa bank_mask:0xf
    v_bfe_u32 v13, v0, 4, 1
    v_lshl_add_u32 v12, v13, 4, v12
    v_add_f32_dpp v11, v11, v11 row_bcast:31 row_mask:0xc bank_mask:0xf
    v_lshrrev_b32 v13, 5, v0
    v_mul_u32_u24 v13, 768, v13
    s_mul_i32 s57, {sW}, 1536
    v_add3_u32 v12, v12, v13, s57
    s_lshl_b32 s57, {sW}, 3
    v_mov_b32 v13, s57
    s_mov_b32 exec_lo, 0x00ff00ff
    s_mov_b32 exec_hi, 0xff00ff00
    ds_write_b128 v12, v[{ACC}:{ACC+3}] offset:{L_PART}
    ds_write_b128 v12, v[{ACC+4}:{ACC+7}] offset:{L_PART+256}
    ds_write_b128 v12, v[{ACC+8}:{ACC+11}] offset:{L_PART+512}
    s_mov_b32 exec_lo, 0
    s_mov_b32 exec_hi, 0x80000000
    ds_write_b64 v13, v[10:11] offset:{L_ML}
    s_waitcnt lgkmcnt(0)
    s_barrier
    """)
    stamp_dump(STAMPV_S)
    if prof:
        a(f"""
        v_add_u32 v1, 0x80000, v1
        global_store_dword v1, v53, s[{sWS}:{sWS+1}]
        v_add_u32 v1, 0x80000, v1
        global_store_dword v1, v54, s[{sWS}:{sWS+1}]
        s_waitcnt vmcnt(0)
        """)
    a(f"""
    s_endpgm
    L_fail:
    s_mov_b64 exec, 1
    s_lshl_b32 s52, s2, 3
    s_add_u32 s52, s52, s3
    s_or_b32 s52, s52, 0xdead0000
    v_mov_b32 v1, 0
    v_mov_b32 v2, s52
    global_store_dword v1, v2, s[{sDBG}:{sDBG+1}]
    L_exit:
    s_endpgm
    """)

    body = pad(a.L)
    hdr = open(os.path.join(os.path.dirname(os.path.abspath(__file__)), "..", "cdna_kernels", NAME + ".s.ref")).read().split("\n")
    hdr = [l for l in hdr if l.startswith(";") and "@launch" not in l and "Override launch" not in l and "grid=ceil" not in l]
    out = hdr + [f"; @launch grid=(256,1,1) block=(512,1,1) lds={LDS_BYTES}",
                 '.amdgcn_target "amdgcn-amd-amdhsa--gfx950"', ".text", f".globl {NAME}_kernel", ".p2align 8",
                 f".type {NAME}_kernel,@function", f"{NAME}_kernel:"] + body + [
        '.section .rodata,"a"', ".p2align 6", f".amdhsa_kernel {NAME}_kernel",
        "  .amdhsa_next_free_vgpr 256", "  .amdhsa_next_free_sgpr 102", "  .amdhsa_accum_offset 256",
        "  .amdhsa_group_segment_fixed_size 0", "  .amdhsa_kernarg_size 112", "  .amdhsa_user_sgpr_count 2",
        "  .amdhsa_user_sgpr_kernarg_segment_ptr 1", "  .amdhsa_system_sgpr_workgroup_id_x 1",
        "  .amdhsa_float_denorm_mode_32 3", ".end_amdhsa_kernel"]
    return "\n".join(out) + "\n"


if __name__ == "__main__":
    outp = sys.argv[1]
    kw = eval("dict(" + (sys.argv[2] if len(sys.argv) > 2 else "") + ")")
    open(outp, "w").write(gen(**kw))
```

```python
import sys, os
sys.path.insert(0, os.path.dirname(os.path.abspath(__file__)))
from asmlib import Asm, pad

NAME = "adaLN_cond__mha_block_cached__glu_gated_geglu__decode"

WS_EPOCH = 0
WS_CLR = 256
WS_CNT = 4096
WS_MOD = 0x4000
WS_Q = 0x8000
WS_PO = 0x80000
WS_PML = 0xC0000
WS_MB = WS_MOD + 5120
WS_GU = 0xC4000
WS_AP = 0xC5800
WS_USED = 0x100000
WS_STAMP = 0x100000
L_PROG = 0
L_SB = 16
L_FREE = 32
L_FL0 = 48
L_SB2 = 64
L_RB = 128
L_QV = 1152
L_XV = 2048
L_PART = 5120
L_ML = 11264
L_STAT = 11328
L_STG = 12288

END = 0x7FFFFFFF
OOB = 0x4000000
LOG2E = 0x3FB8AA3B
SCALE = 0x3D93CD3A
HEADBYTES = 32768 * 384

sX, sK, sV, sWQ, sWO, sGATE, sUP, sDOWN, sC, sWM, sOUT, sDBG, sWS = 4, 6, 8, 10, 12, 16, 18, 20, 22, 24, 26, 28, 30
WSR = "s[32:35]"; AR = "s[36:39]"; BR = "s[40:43]"; CR = "s[44:47]"
sH, sS, sTAG, sE = "s48", "s49", "s50", "s51"
sSPIN = "s68"


def gen(NSTAT=52, D=2, NL=3, prof=False, SH=3, LA=0, dbgt=False, PACE=10, HOLD=9, HOLDM=True, SLOW=0, DLY=0, JIT=0, MINT=True, EM=8, NMIN=1, EARLY=True, LATEK=False, GSL=2, H3=True, PQ=3, SQ=12, GPH=5, T2G=2, GATE3=2, RAP=1, DRY=True, SKIPZ=True, QD=0, XP='', LP3=False, SIM3=True, SIM2=True, PERT=None, FASTT=True):
    a = Asm()
    PR = 512 - 8 * NSTAT
    R = 4
    NPRE = R + NL
    assert NSTAT <= 64 and NSTAT >= NPRE + D and NSTAT + PR + 1 <= 256
    LDS_BYTES = L_STG + max(98304, NL * 49152)
    STAMPV_S, STAMPV_H = 19, 63

    def stamp(i, v):
        if prof == 2 and not ((v == STAMPV_H and i in (0, 12)) or (v == STAMPV_S and i in (0, 3))): return
        if prof:
            a(f"""
            s_memrealtime s[98:99]
            s_waitcnt lgkmcnt(0)
            v_writelane_b32 v{v}, s98, {i}
            """)

    def stamp_dump(v):
        if prof:
            a(f"""
            s_mov_b64 exec, -1
            s_lshl_b32 s98, s2, 3
            s_add_u32 s98, s98, s3
            s_lshl_b32 s98, s98, 8
            s_add_u32 s98, s98, {WS_STAMP}
            v_lshlrev_b32 v1, 2, v0
            v_add_u32 v1, s98, v1
            global_store_dword v1, v{v}, s[{sWS}:{sWS+1}]
            s_waitcnt vmcnt(0)
            """)

    def dbgstamp(slot, inv=False):
        if dbgt:
            a(f"""
            s_memrealtime s[98:99]
            s_mov_b64 s[96:97], exec
            s_waitcnt lgkmcnt(0)
            {"s_not_b32 s98, s98" if inv else ""}
            s_mov_b64 exec, 1
            v_mov_b32 v254, s98
            v_mov_b32 v255, {4*slot}
            global_atomic_umax v255, v254, s[{sDBG}:{sDBG+1}] sc1
            s_mov_b64 exec, s[96:97]
            """)

    def spin_check():
        a(f"s_sub_u32 {sSPIN}, {sSPIN}, 1\ns_cbranch_scc1 L_fail")

    def srd(r, base, size):
        a(f"""
        s_mov_b32 s{r}, s{base}
        s_mov_b32 s{r+1}, s{base+1}
        s_mov_b32 s{r+2}, {size}
        s_mov_b32 s{r+3}, 0x20000
        """)

    def bf16_round1(v, t=None):
        a(f"v_cvt_pk_bf16_f32 v{v}, v{v}, v{v}\nv_and_b32 v{v}, 0xffff0000, v{v}")

    def bf16_round2(v0, v1):
        a(f"""
        v_cvt_pk_bf16_f32 v{v1}, v{v0}, v{v1}
        v_lshlrev_b32 v{v0}, 16, v{v1}
        v_and_b32 v{v1}, 0xffff0000, v{v1}
        """)

    def unpack2(src, lo, hi):
        assert lo != src
        a(f"v_lshlrev_b32 v{lo}, 16, v{src}\nv_and_b32 v{hi}, 0xffff0000, v{src}")

    def reduce64(vs):
        for m in ("row_ror:8 row_mask:0xf", "row_ror:4 row_mask:0xf", "row_ror:2 row_mask:0xf", "row_ror:1 row_mask:0xf",
                  "row_bcast:15 row_mask:0xa", "row_bcast:31 row_mask:0xc"):
            for v in vs:
                a(f"v_add_f32_dpp v{v}, v{v}, v{v} {m} bank_mask:0xf")

    def silu(x, t):
        a(f"""
        v_mul_f32 v{t}, 0x{0x80000000 | LOG2E:08x}, v{x}
        v_exp_f32 v{t}, v{t}
        v_add_f32 v{t}, 1.0, v{t}
        v_rcp_f32 v{t+1}, v{t}
        v_mul_f32 v{t+2}, v{x}, v{t+1}
        v_fma_f32 v{t}, -v{t+2}, v{t}, v{x}
        v_fma_f32 v{x}, v{t}, v{t+1}, v{t+2}
        v_cmp_class_f32 vcc, v{x}, 3
        v_cndmask_b32 v{x}, v{x}, v{t+2}, vcc
        """)

    def div_rn(q, n, d, r, t):
        a(f"""
        v_mul_f32 v{q}, v{n}, v{r}
        v_fma_f32 v{t}, -v{q}, v{d}, v{n}
        v_fmac_f32 v{q}, v{t}, v{r}
        """)

    def soft_barrier(idx):
        lab = a.lab("L_sb")
        a(f"""
        v_mov_b32 v1, {L_SB + 4*idx if idx < 4 else L_SB2}
        v_mov_b32 v2, 1
        s_mov_b64 exec, 1
        ds_add_u32 v1, v2
        s_mov_b64 exec, -1
        {lab}:
        """)
        spin_check()
        a(f"""
        ds_read_b32 v2, v1
        s_waitcnt lgkmcnt(0)
        v_readfirstlane_b32 s52, v2
        s_cmp_lt_u32 s52, 4
        s_cbranch_scc1 {lab}
        """)

    def gemv(nkb, D, xaddr, wbase=64, tmp=32, ntmp=7):
        for i in range(min(ntmp, nkb)):
            a(f"ds_read_b128 v[{tmp+4*i}:{tmp+4*i+3}], v{xaddr} offset:{64*i}")
        for kb in range(nkb):
            outstanding = min(ntmp, nkb - kb) - 1
            t = tmp + 4 * (kb % ntmp)
            a(f"s_waitcnt lgkmcnt({outstanding})")
            c = "0" if kb == 0 else f"v[{D}:{D+3}]"
            a(f"v_mfma_f32_16x16x32_bf16 v[{D}:{D+3}], v[{wbase+4*kb}:{wbase+4*kb+3}], v[{t}:{t+3}], {c}")
            if kb + ntmp < nkb:
                a(f"ds_read_b128 v[{t}:{t+3}], v{xaddr} offset:{64*(kb+ntmp)}")

    a(f"""
    s_cmp_ge_u32 s2, 256
    s_cbranch_scc1 L_exit
    s_load_dwordx16 s[4:19], s[0:1], 0
    s_load_dwordx8 s[20:27], s[0:1], 64
    s_load_dwordx4 s[28:31], s[0:1], 96
    v_lshrrev_b32 v1, 6, v0
    v_and_b32 v0, 63, v0
    s_lshr_b32 {sH}, s2, 3
    v_readfirstlane_b32 s3, v1
    s_and_b32 {sS}, s2, 7
    s_mov_b32 {sSPIN}, 0x200000
    s_sub_u32 s63, {sS}, {sH}
    s_and_b32 s63, s63, 7
    s_cmp_eq_u32 s63, 3
    s_cselect_b32 s62, 1, 0
    s_cmp_lt_u32 {sH}, 20
    s_cselect_b32 s62, s62, 0
    s_cmp_lt_u32 s63, 3
    s_cselect_b32 s62, 2, s62
    {"s_mov_b32 s62, 0" if 'noq' in XP else ""}
    s_cmp_ge_u32 s3, 4
    s_cbranch_scc1 L_stream
    """)
    sISM = "s62"

    def ppoll(tag, P, nld, stagger, issue, check, take):
        for b in range(P):
            issue(b)
            if b < P - 1: a(f"s_sleep {stagger}")
        a(f"L_pp{tag}:")
        for b in range(P):
            a(f"s_waitcnt vmcnt({nld*(P-1)})")
            check(b)
            a(f"s_cbranch_vccz L_pp{tag}_{b}")
            if b == 0: spin_check()
            issue(b)
        a(f"s_branch L_pp{tag}")
        for b in range(P):
            a(f"L_pp{tag}_{b}:")
            take(b)
            if b < P - 1: a(f"s_branch L_pp{tag}_x")
        a(f"L_pp{tag}_x:")

    def tag_calc():
        a(f"s_mul_i32 {sTAG}, {sE}, 0x9E3779B1\ns_add_u32 {sTAG}, {sTAG}, 0x7F4A7C15")

    def silu_slice():
        unpack2(12, 14, 15); unpack2(13, 16, 17)
        for i in range(4): silu(14 + i, 18)
        a(f"""
        v_cvt_pk_bf16_f32 v12, v14, v15
        v_cvt_pk_bf16_f32 v13, v16, v17
        s_mov_b32 exec_hi, 0xff
        ds_write_b64 v10, v[12:13] offset:{L_XV}
        s_mov_b64 exec, -1
        """)

    def stage_tr(wbase, nkb, va0, va1):
        for kb in range(nkb):
            for u in range(2):
                r = wbase + 4 * kb + 2 * u
                va, off = (va0, kb * 4096 + u * 512) if kb < 16 else (va1, (kb - 16) * 4096 + u * 512)
                a(f"ds_read_b64_tr_b16 v[{r}:{r+1}], v{va} offset:{off}")
            if kb % 4 == 3: a("s_waitcnt lgkmcnt(6)" if kb < nkb - 1 else "s_waitcnt lgkmcnt(0)")

    def mod_publish(soff):
        a(f"""
        v_lshlrev_b32 v10, 4, v5
        v_mov_b32 v22, {sTAG}
        v_mov_b32 v23, {sTAG}
        v_cvt_pk_bf16_f32 v20, v16, v17
        v_cvt_pk_bf16_f32 v21, v18, v19
        s_mov_b32 exec_lo, 0x00010001
        s_mov_b32 exec_hi, 0x00010001
        buffer_store_dwordx4 v[20:23], v10, {WSR}, {soff} offen sc1
        s_mov_b64 exec, -1
        """)

    a("s_setprio 3")
    if prof: a(f"v_mov_b32 v{STAMPV_H}, 0")
    stamp(0, STAMPV_H)
    a(f"""
    v_lshrrev_b32 v3, 3, v0
    v_and_b32 v4, 7, v0
    v_lshrrev_b32 v5, 4, v0
    v_and_b32 v6, 15, v0
    v_lshrrev_b32 v7, 2, v6
    v_lshl_add_u32 v7, v5, 3, v7
    v_lshlrev_b32 v7, 7, v7
    v_and_b32 v8, 3, v6
    v_lshl_add_u32 v7, v8, 3, v7
    v_lshlrev_b32 v11, 2, v0
    v_mov_b32 v12, -1
    v_mov_b32 v13, -1
    s_cmp_eq_u32 s3, 2
    s_cbranch_scc1 L_init2
    s_cmp_eq_u32 s3, 1
    s_cbranch_scc0 L_init3
    s_mul_i32 s52, {sH}, {GPH}
    s_add_u32 s52, s52, {sS}
    s_lshl_b32 s52, s52, 2
    v_lshlrev_b32 v10, 5, v0
    v_add_u32 v10, s52, v10
    v_and_b32 v10, 2047, v10
    v_cmp_gt_u32 vcc, {NSTAT}, v0
    v_cndmask_b32 v10, v12, v10, vcc
    ds_write_b32 v11, v10 offset:{L_RB}
    ds_write_b32 v11, v12 offset:{L_RB+256}
    ds_write_b32 v11, v12 offset:{L_RB+512}
    ds_write_b32 v11, v12 offset:{L_RB+768}
    s_branch L_init_done
    L_init2:
    v_lshlrev_b32 v10, 3, v0
    ds_write_b64 v10, v[12:13] offset:{L_QV}
    s_branch L_init_done
    L_init3:
    v_and_b32 v10, 31, v0
    v_lshlrev_b32 v10, 2, v10
    v_mov_b32 v12, 0
    ds_write_b32 v10, v12 offset:0
    L_init_done:
    v_min_u32 v13, 39, v0
    s_mul_i32 s52, s3, 320
    v_lshl_add_u32 v10, v13, 3, s52       ; v10 = (160 w + 4 p) * 2
    s_lshl_b32 s58, s3, 2
    s_waitcnt lgkmcnt(0)
    s_load_dword {sE}, s[{sWS}:{sWS+1}], {WS_EPOCH}
    """)
    srd(32, sWS, WS_USED)
    a(f"""
    s_cmp_eq_u32 {sISM}, 0
    s_cbranch_scc1 L_issued
    s_mov_b32 s39, 0x20000
    s_cmp_eq_u32 {sISM}, 2
    s_cbranch_scc1 L_pq
    """)
    srd(44, sC, 1280)
    a(f"""
    buffer_load_dwordx2 v[12:13], v10, {CR}, 0 offen
    s_mov_b32 s36, s{sWM}
    s_mov_b32 s37, s{sWM+1}
    s_mov_b32 s38, {640*7680}
    s_mov_b32 s57, 7680
    s_lshl_b32 s56, {sH}, 7
    s_lshl_b32 s59, {sH}, 8
    s_add_u32 s59, s59, {WS_MOD}
    s_branch L_pdma
    L_pq:
    """)
    srd(40, sX, 1280)
    for i in range(5):
        a(f"buffer_load_dword v{24+i}, v11, {BR}, 0 offen offset:{256*i}")
    a(f"""
    buffer_load_dwordx2 v[30:31], v10, {BR}, 0 offen
    s_mov_b32 s36, s{sWQ}
    s_mov_b32 s37, s{sWQ+1}
    s_mov_b32 s38, {640*12288}
    s_mov_b32 s57, 12288
    s_mul_i32 s53, {sH}, 3
    s_add_u32 s53, s53, s63
    s_lshl_b32 s56, s53, 7
    s_lshl_b32 s59, s53, 8
    s_add_u32 s59, s59, {WS_Q}
    s_or_b32 s52, s63, s3
    s_cmp_lg_u32 s52, 0
    s_cbranch_scc1 L_pdma
    s_lshl_b32 s52, {sH}, 8
    s_add_u32 s52, s52, {WS_CNT}
    v_mov_b32 v9, 0
    s_mov_b64 exec, 1
    buffer_store_dword v9, v9, {WSR}, s52 offen sc1
    s_mov_b64 exec, -1
    L_pdma:
    v_mul_lo_u32 v9, s57, v3
    v_lshl_add_u32 v9, v4, 4, v9
    s_lshl_b32 s52, s57, 3
    s_mul_i32 s52, s52, s3
    s_add_u32 s56, s56, s52
    s_lshl_b32 s57, s57, 5
    s_lshl_b32 s52, s3, 10
    s_add_u32 m0, s52, {L_STG}
    s_mov_b32 s52, 20
    L_mdma:
    buffer_load_dwordx4 v9, {AR}, s56 offen nt lds
    s_add_u32 m0, m0, 4096
    s_add_u32 s56, s56, s57
    s_sub_u32 s52, s52, 1
    s_cmp_lg_u32 s52, 0
    s_cbranch_scc1 L_mdma
    s_lshl_b32 s52, s3, 6
    s_add_u32 s59, s59, s52
    L_issued:
    s_barrier
    """)
    stamp(1, STAMPV_H)
    a(f"""
    v_mov_b32 v47, s58
    v_mov_b32 v46, 1
    s_cmp_lg_u32 {sISM}, 0
    s_cbranch_scc1 L_prod
    ds_write_b32 v47, v46 offset:{L_FL0}
    s_waitcnt lgkmcnt(0)
    """)
    tag_calc()
    a(f"""
    s_branch L_qp
    L_prod:
    s_waitcnt vmcnt(20)
    s_cmp_eq_u32 {sISM}, 2
    s_cbranch_scc1 L_ln
    """)
    silu_slice()
    a("s_branch L_pw\nL_ln:")
    for i in range(5):
        unpack2(24 + i, 32 + 2 * i, 33 + 2 * i)
    a("v_readfirstlane_b32 s52, v32")
    for i in range(10):
        a(f"v_subrev_f32 v{32+i}, s52, v{32+i}")
    a("v_add_f32 v42, v32, v33\nv_mul_f32 v43, v32, v32\nv_fmac_f32 v43, v33, v33")
    for i in range(2, 10):
        a(f"v_add_f32 v42, v42, v{32+i}\nv_fmac_f32 v43, v{32+i}, v{32+i}")
    reduce64([42, 43])
    a(f"""
    v_readlane_b32 s53, v42, 63
    v_readlane_b32 s54, v43, 63
    v_mov_b32 v44, 0x3acccccd             ; 1/640
    v_mul_f32 v42, s53, v44               ; S1/n
    v_mul_f32 v43, s54, v44               ; S2/n
    v_fma_f32 v43, -v42, v42, v43         ; var
    v_add_f32 v42, s52, v42               ; mean
    """)
    bf16_round2(42, 43)
    a("v_add_f32 v43, 0x3727c5ac, v43")
    bf16_round1(43)
    a("v_sqrt_f32 v43, v43")
    bf16_round1(43)
    a("v_rcp_f32 v44, v43")
    unpack2(30, 32, 33); unpack2(31, 34, 35)
    for k in range(4): a(f"v_sub_f32 v{32+k}, v{32+k}, v42")
    bf16_round2(32, 33); bf16_round2(34, 35)
    for k in range(4): div_rn(28 + k, 32 + k, 43, 44, 45)
    bf16_round2(28, 29); bf16_round2(30, 31)
    a(f"""
    L_pw:
    s_lshl_b32 s52, s3, 5
    v_add_u32 v14, s52, v7
    v_add_u32 v14, {L_STG}, v14
    v_add_u32 v15, 0x10000, v14
    v_lshlrev_b32 v12, 4, v5
    v_add_u32 v12, {L_XV}, v12
    v_lshlrev_b32 v13, 1, v10
    s_mov_b32 s54, {WS_MOD}
    s_waitcnt vmcnt(0) lgkmcnt(0)
    """)
    tag_calc()
    soft_barrier(3)
    stamp(2, STAMPV_H)
    stage_tr(64, 20, 14, 15)
    a(f"""
    s_cmp_eq_u32 {sISM}, 2
    s_cbranch_scc0 L_pg
    L_mp:
    """)
    spin_check()
    a(f"""
    buffer_load_dwordx4 v[16:19], v13, {WSR}, s54 offen sc1
    buffer_load_dwordx4 v[20:23], v13, {WSR}, s54 offen offset:2560 sc1
    s_waitcnt vmcnt(0)
    v_xor_b32 v24, {sTAG}, v18
    v_bitop3_b32 v24, v24, v22, {sTAG} bitop3:0xf6
    v_cmp_ne_u32 vcc, 0, v24
    s_cbranch_vccnz L_mp
    """)
    stamp(3, STAMPV_H)
    unpack2(21, 22, 23); unpack2(20, 24, 21)
    a("v_add_f32 v20, 1.0, v24")
    for k in range(1, 4): a(f"v_add_f32 v{20+k}, 1.0, v{20+k}")
    unpack2(16, 24, 25); unpack2(17, 26, 27)
    bf16_round2(20, 21); bf16_round2(22, 23)
    for k in (0, 2): a(f"v_pk_mul_f32 v[{20+k}:{21+k}], v[{28+k}:{29+k}], v[{20+k}:{21+k}]")
    bf16_round2(20, 21); bf16_round2(22, 23)
    for k in (0, 2): a(f"v_pk_add_f32 v[{20+k}:{21+k}], v[{20+k}:{21+k}], v[{24+k}:{25+k}]")
    a(f"""
    v_cvt_pk_bf16_f32 v20, v20, v21
    v_cvt_pk_bf16_f32 v21, v22, v23
    ds_write_b64 v10, v[20:21] offset:{L_XV}
    s_waitcnt lgkmcnt(0)
    """)
    soft_barrier(4)
    a("L_pg:")
    gemv(20, 16, 12)
    mod_publish("s59")
    a(f"v_mov_b32 v47, s58\nv_mov_b32 v46, 1\nds_write_b32 v47, v46 offset:{L_FL0}")
    stamp(4, STAMPV_H)
    a(f"""
    L_qp:
    s_cmp_lg_u32 s3, 0
    s_cbranch_scc1 L_mid
    v_min_u32 v15, 47, v0
    v_lshlrev_b32 v11, 3, v15
    v_lshlrev_b32 v15, 4, v15
    s_mul_i32 s56, {sH}, 768
    s_add_u32 s56, s56, {WS_Q}
    """)
    if 'noq' in XP:
        a(f"""
        s_lshl_b32 s52, {sH}, 8
        s_add_u32 s52, s52, {WS_CNT}
        v_mov_b32 v16, 0
        v_mov_b32 v17, 0
        s_mov_b64 exec, 1
        buffer_store_dword v16, v16, {WSR}, s52 offen sc1
        s_mov_b64 exec, -1
        """)
    else: ppoll("q", PQ, 1, SQ,
          lambda b: a(f"buffer_load_dwordx4 v[{144+4*b}:{147+4*b}], v15, {WSR}, s56 offen sc1"),
          lambda b: a(f"v_cmp_ne_u32 vcc, {sTAG}, v{146+4*b}"),
          lambda b: a(f"v_min_u32 v16, -2, v{144+4*b}\nv_min_u32 v17, -2, v{145+4*b}"))
    a(f"ds_write_b64 v11, v[16:17] offset:{L_QV}")
    stamp(5, STAMPV_H)

    sROLE, sG, sK5, sID, sSTR, sSOF, sNB = "s69", "s70", "s71", "s72", "s73", "s74", "s75"
    a(f"""
    L_mid:
    s_setprio 0
    s_waitcnt vmcnt(0)
    s_mov_b32 {sROLE}, 0
    {"s_branch L_mid_done" if 'norole' in XP else ""}
    s_mov_b32 s39, 0x20000
    s_cmp_ge_u32 {sS}, 6
    s_cbranch_scc1 L_rclr
    s_cmp_ge_u32 {sS}, 3
    s_cbranch_scc1 L_rs345
    s_lshl_b32 s53, {sS}, 1
    s_sub_u32 s52, {sH}, s53
    s_and_b32 s52, s52, 31
    s_cmp_eq_u32 {sS}, 2
    s_cselect_b32 s54, 20, 30
    s_sub_u32 {sID}, s52, s54
    s_add_u32 {sID}, {sID}, s53
    s_cmp_ge_u32 s52, s54
    s_cbranch_scc1 L_r5
    s_mul_i32 {sG}, s52, 205
    s_lshr_b32 {sG}, {sG}, 11
    s_mul_i32 s54, {sG}, 10
    s_sub_u32 {sK5}, s52, s54
    s_mul_i32 s54, {sS}, 3
    s_add_u32 {sG}, {sG}, s54
    s_branch L_r2
    L_rs345:
    s_cmp_eq_u32 {sS}, 5
    s_cbranch_scc1 L_rs5
    s_sub_u32 s53, {sS}, 3
    s_mul_i32 {sID}, s53, 24
    s_add_u32 {sID}, {sID}, {sH}
    s_cmp_lt_u32 {sH}, 24
    s_cbranch_scc1 L_r3
    s_lshl_b32 s53, s53, 3
    s_add_u32 {sID}, {sH}, s53
    s_sub_u32 {sID}, {sID}, 8
    s_branch L_r5
    L_rs5:
    s_sub_u32 {sID}, {sH}, 20
    s_cmp_lt_u32 {sID}, 10
    s_cbranch_scc1 L_r4
    s_add_u32 {sID}, {sH}, 2
    s_and_b32 {sID}, {sID}, 31
    s_cmp_lt_u32 {sID}, 8
    s_cbranch_scc0 L_mid_done
    s_add_u32 {sID}, {sID}, 32
    s_branch L_r5
    L_rclr:
    s_lshl_b32 s52, {sS}, 5
    s_add_u32 s52, s52, {sH}
    """)
    a(f"""
    s_cmp_lg_u32 s3, 1
    s_cbranch_scc1 L_mid_done
    v_mov_b32 v12, -1
    v_mov_b32 v13, -1
    v_mov_b32 v14, -1
    v_mov_b32 v15, -1
    v_lshlrev_b32 v10, 4, v0
    s_sub_u32 s53, s52, 192
    s_lshl_b32 s52, s53, 10
    s_add_u32 s52, s52, {WS_GU}
    s_branch L_clr1
    L_clr:
    buffer_store_dwordx4 v[12:15], v10, {WSR}, s52 offen sc1
    s_add_u32 s52, s52, 65536
    L_clr1:
    s_cmp_lt_u32 s52, {WS_AP + RAP*20480}
    s_cbranch_scc1 L_clr
    v_mov_b32 v11, {sTAG}
    v_mov_b32 v10, 0
    s_lshl_b32 s52, s53, 2
    s_add_u32 s52, s52, {WS_CLR}
    s_waitcnt vmcnt(0)
    s_mov_b64 exec, 1
    buffer_store_dword v11, v10, {WSR}, s52 offen sc1
    s_mov_b64 exec, -1
    s_branch L_mid_done
    L_r2:
    s_mov_b32 {sROLE}, 2
    s_mov_b32 s36, s{sWO}
    s_mov_b32 s37, s{sWO+1}
    s_mov_b32 s38, {6144*1280}
    s_mov_b32 {sSTR}, 1280
    s_mul_i32 {sSOF}, {sG}, {768*1280}
    s_lshl_b32 s52, {sK5}, 7
    s_add_u32 {sSOF}, {sSOF}, s52
    s_mov_b32 {sNB}, 24
    s_branch L_stage
    L_r3:
    s_mov_b32 {sROLE}, 3
    s_cmp_ge_u32 {sID}, 24
    s_cselect_b32 s36, s{sUP}, s{sGATE}
    s_cselect_b32 s37, s{sUP+1}, s{sGATE+1}
    s_cselect_b32 s52, 24, 0
    s_mov_b32 s38, {640*3072}
    s_mov_b32 {sSTR}, 3072
    s_sub_u32 s52, {sID}, s52
    s_lshl_b32 {sSOF}, s52, 7
    s_mov_b32 {sNB}, 20
    s_branch L_stage
    L_r4:
    s_mov_b32 {sROLE}, 4
    s_mov_b32 s36, s{sDOWN}
    s_mov_b32 s37, s{sDOWN+1}
    s_mov_b32 s38, {1536*1280}
    s_mov_b32 {sSTR}, 1280
    s_lshl_b32 {sSOF}, {sID}, 7
    s_mov_b32 {sNB}, 24
    s_branch L_stage
    L_r5:
    s_mov_b32 {sROLE}, 5
    s_mov_b32 s36, s{sWM}
    s_mov_b32 s37, s{sWM+1}
    s_mov_b32 s38, {640*7680}
    s_mov_b32 {sSTR}, 7680
    s_lshl_b32 {sSOF}, {sID}, 7
    s_add_u32 {sSOF}, {sSOF}, 2560
    s_mov_b32 {sNB}, 20
    """)
    a(f"""
    L_stage:
    v_mul_lo_u32 v9, {sSTR}, v3
    v_lshl_add_u32 v9, v4, 4, v9
    s_lshl_b32 s53, {sSTR}, 3
    s_mul_i32 s52, s53, s3
    s_add_u32 {sSOF}, {sSOF}, s52
    s_lshl_b32 s53, {sSTR}, 5
    s_lshl_b32 s54, s3, 5
    v_add_u32 v10, s54, v7
    v_add_u32 v10, {L_STG}, v10
    v_add_u32 v11, 0x10000, v10
    """)
    if NL:
        a(f"v_mov_b32 v1, {L_FREE}\nL_freew:")
        spin_check()
        a("""
        s_sleep 4
        ds_read_b128 v[16:19], v1
        s_waitcnt lgkmcnt(0)
        v_and_b32 v16, v16, v17
        v_and_b32 v18, v18, v19
        v_and_b32 v16, v16, v18
        v_cmp_eq_u32 vcc, 0, v16
        s_cbranch_vccnz L_freew
        """)
    assert NL
    a(f"s_cmp_lg_u32 {sROLE}, 5\ns_cbranch_scc1 L_nosilu")
    srd(44, sC, 1280)
    a(f"""
    v_mov_b32 v21, v10
    s_mul_i32 s52, s3, 320
    v_lshlrev_b32 v10, 3, v0
    buffer_load_dwordx2 v[12:13], v10, {CR}, s52 offen
    v_add_u32 v10, s52, v10
    s_waitcnt vmcnt(0)
    """)
    silu_slice()
    a("v_mov_b32 v10, v21\nL_nosilu:")

    def stage_dma():
        lab = a.lab("L_dma")
        a(f"""
        s_lshl_b32 s52, s3, 10
        s_add_u32 m0, s52, {L_STG}
        s_mov_b32 s55, {sNB}
        {lab}:
        buffer_load_dwordx4 v9, {AR}, {sSOF} offen nt lds
        s_add_u32 m0, m0, 4096
        s_add_u32 {sSOF}, {sSOF}, s53
        s_sub_u32 s55, s55, 1
        s_cmp_lg_u32 s55, 0
        s_cbranch_scc1 {lab}
        s_waitcnt vmcnt(0) lgkmcnt(0)
        """)

    stage_dma()
    soft_barrier(0)
    stage_tr(64, 24, 10, 11)
    a(f"s_cmp_lg_u32 {sROLE}, 4\ns_cbranch_scc1 L_staged")
    soft_barrier(1)
    stage_dma()
    soft_barrier(2)
    stage_tr(160, 24, 10, 11)
    a(f"""
    L_staged:
    v_lshlrev_b32 v12, 4, v5
    v_add_u32 v12, {L_XV}, v12
    s_cmp_lg_u32 {sROLE}, 5
    s_cbranch_scc1 L_not5
    """)
    gemv(20, 16, 12)
    a(f"""
    s_lshl_b32 s52, {sID}, 8
    s_lshl_b32 s53, s3, 6
    s_add_u32 s52, s52, s53
    s_add_u32 s52, s52, {WS_MB}
    """)
    mod_publish("s52")
    a(f"""
    s_branch L_mid_done
    L_not5:
    """)
    a(f"""
    v_lshlrev_b32 v10, 2, v0
    s_mov_b32 s52, {WS_CLR}
    L_clrwait:
    """)
    spin_check()
    a(f"""
    s_sleep 8
    buffer_load_dword v13, v10, {WSR}, s52 offen sc1
    s_waitcnt vmcnt(0)
    v_cmp_ne_u32 vcc, {sTAG}, v13
    s_cbranch_vccnz L_clrwait
    s_cmp_eq_u32 {sROLE}, 2
    s_cbranch_scc1 L_mid_done
    """)
    srd(40, sX, 1280)
    a(f"""
    s_cmp_eq_u32 {sROLE}, 4
    s_cbranch_scc1 L_m4
    s_mul_i32 s52, s3, 640
    v_min_u32 v13, 39, v0
    v_lshlrev_b32 v13, 4, v13
    v_add_u32 v13, s52, v13               ; (160 w + 4p) * 4
    s_mov_b32 s53, {WS_MB + 2560}
    s_mov_b32 s54, {WS_MB + 5120}
    s_branch L_m34
    L_m4:
    s_lshl_b32 s52, {sID}, 8
    s_lshl_b32 s53, s3, 6
    s_add_u32 s52, s52, s53
    v_lshlrev_b32 v13, 4, v5
    v_add_u32 v13, s52, v13               ; (64 id + 16 w + 4 g) * 4
    s_mov_b32 s53, {WS_MB + 7680}
    s_mov_b32 s54, {WS_MB + 7680}
    L_m34:
    v_lshrrev_b32 v14, 1, v13
    s_mov_b32 s52, {WS_MB}
    buffer_load_dwordx2 v[28:29], v14, {BR}, 0 offen
    L_mbpoll:
    """)
    spin_check()
    a(f"""
    s_sleep 8
    buffer_load_dwordx4 v[16:19], v13, {WSR}, s52 offen sc1
    buffer_load_dwordx4 v[20:23], v13, {WSR}, s53 offen sc1
    buffer_load_dwordx4 v[24:27], v13, {WSR}, s54 offen sc1
    v_mov_b32 v15, 0
    s_waitcnt vmcnt(0)
    v_bitop3_b32 v15, v15, v18, {sTAG} bitop3:0xf6
    v_bitop3_b32 v15, v15, v22, {sTAG} bitop3:0xf6
    v_bitop3_b32 v15, v15, v26, {sTAG} bitop3:0xf6
    v_cmp_ne_u32 vcc, 0, v15
    s_cbranch_vccnz L_mbpoll
    """)
    unpack2(28, 44, 45); unpack2(29, 46, 47)
    unpack2(16, 48, 49); unpack2(17, 50, 51)
    unpack2(20, 52, 53); unpack2(21, 54, 55)
    unpack2(24, 56, 57); unpack2(25, 58, 59)
    for i in range(4): a(f"v_add_f32 v{56+i}, 1.0, v{56+i}")
    bf16_round2(56, 57); bf16_round2(58, 59)
    a("L_mid_done:")
    stamp(6, STAMPV_H)

    if DRY:
        a("""
        s_mov_b64 s[4:5], 0
        s_mov_b64 s[6:7], 0
        s_mov_b64 s[8:9], 0
        s_mov_b64 s[10:11], 0
        s_mov_b64 s[12:13], 0
        s_mov_b32 s14, 1
        s_mov_b64 exec, 0
        s_branch L_b5
        """)
    a("""
    L_dry_done:
    s_setprio 0
    s_mov_b64 exec, -1
    s_mov_b64 s[4:5], -1
    s_mov_b32 s6, 0x00010001
    s_mov_b32 s7, 0x00010001
    s_mov_b32 s8, -1
    s_mov_b32 s9, 0xff
    s_mov_b32 s10, 0
    s_mov_b32 s11, 0x80000000
    s_mov_b64 s[12:13], 1
    s_mov_b32 s14, 0
    """)
    sKN, sEST, sN, sR = "s76", "s77", "s78", "s79"
    a(f"""
    s_cmp_lg_u32 s3, 0
    s_cbranch_scc1 L_b5
    s_lshl_b32 s52, {sH}, 8
    s_add_u32 s52, s52, {WS_CNT}
    s_add_u32 s60, s{sWS}, s52
    s_addc_u32 s61, s{sWS+1}, 0
    s_mov_b32 {sKN}, {L_RB + 4*NSTAT}
    s_mov_b32 {sEST}, -1
    s_mov_b32 s63, {4*LA}
    v_mov_b32 v10, 0
    L_grab:
    """)
    spin_check()
    a(f"""
    s_sleep {GSL}
    ds_read_b128 v[16:19], v10 offset:{L_PROG}
    s_waitcnt lgkmcnt(0)
    v_{"min" if MINT else "max"}3_u32 v16, v16, v17, v18
    v_{"min" if MINT else "max"}_u32 v16, v16, v19
    v_readfirstlane_b32 s52, v16
    s_add_u32 s52, s52, s63
    s_cmp_lt_u32 s52, {sKN}
    s_cbranch_scc1 L_grab
    s_cmp_lg_u32 {sEST}, -1
    s_cbranch_scc1 L_grab1
    s_load_dword {sEST}, s[60:61], 0 glc
    s_waitcnt lgkmcnt(0)
    L_grab1:
    s_min_u32 s52, {sEST}, {PR}
    s_sub_u32 s52, {PR}, s52
    s_lshr_b32 s52, s52, {SH}
    s_max_u32 {sN}, s52, {NMIN}
    s_mov_b32 {sR}, {sN}
    s_atomic_add {sR}, s[60:61], 0 glc
    s_waitcnt lgkmcnt(0)
    s_min_u32 s53, {sR}, {PR}
    s_sub_u32 s52, {PR}, s53
    s_min_u32 s52, s52, {sN}
    s_mul_i32 s54, {sH}, {GPH}
    s_add_u32 s54, s54, s53
    s_lshl_b32 s54, s54, 2
    s_add_u32 s54, s54, {32*NSTAT}
    v_lshlrev_b32 v16, 2, v0
    v_add_u32 v17, s54, v16
    v_and_b32 v17, 2047, v17
    v_add_u32 v16, {sKN}, v16
    s_add_u32 s55, s53, {sN}
    s_cmp_ge_u32 s55, {PR}
    s_cselect_b32 s56, 1, 0
    v_mov_b32 v18, {END}
    v_cmp_gt_u32 vcc, s52, v0
    v_cndmask_b32 v17, v18, v17, vcc
    s_add_u32 s57, s52, s56
    v_cmp_gt_u32 vcc, s57, v0
    s_and_saveexec_b64 s[58:59], vcc
    ds_write_b32 v16, v17
    s_mov_b64 exec, -1
    s_lshl_b32 s52, s52, 2
    s_add_u32 {sKN}, {sKN}, s52
    s_mul_i32 s52, {sN}, {EM}
    s_add_u32 {sEST}, {sR}, s52
    s_cmp_ge_u32 {sEST}, {PR - JIT if JIT else 1 << 30}
    s_cselect_b32 s63, -4, s63
    s_cmp_eq_u32 s56, 0
    s_cbranch_scc1 L_grab
    s_waitcnt lgkmcnt(0)
    L_b5:
    s_setprio 3
    """)
    stamp(7, STAMPV_H)
    a("s_cmp_lg_u32 s14, 0\ns_cbranch_scc1 L_nb1\ns_barrier\nL_nb1:")
    stamp(8, STAMPV_H)
    a(f"""
    s_cmp_lg_u32 s3, 0
    s_cbranch_scc1 L_t1_done
    v_lshlrev_b32 v10, 2, v0
    v_add_u32 v10, {L_PART}, v10
    v_mov_b32 v11, {L_ML}
    ds_read_b128 v[16:19], v11
    ds_read_b128 v[20:23], v11 offset:16
    """)
    T1R = [24 + i for i in range(20)] + [14, 15, 60, 61]
    for p in range(12):
        a(f"ds_read2st64_b32 v[{T1R[2*p]}:{T1R[2*p+1]}], v10 offset0:{2*p} offset1:{2*p+1}")
    a(f"""
    s_lshl_b32 s52, s2, 10
    s_add_u32 s52, s52, {WS_PO}
    s_lshl_b32 s53, s2, 4
    s_add_u32 s53, s53, {WS_PML}
    v_lshlrev_b32 v11, 4, v0
    s_waitcnt lgkmcnt(12)
    v_min3_f32 v8, v16, v18, v20
    v_min_f32 v8, v8, v22                 ; NMmin
    v_sub_f32 v16, v8, v16
    v_sub_f32 v18, v8, v18
    v_sub_f32 v20, v8, v20
    v_sub_f32 v22, v8, v22
    v_exp_f32 v16, v16
    v_exp_f32 v18, v18
    v_exp_f32 v20, v20
    v_exp_f32 v22, v22
    v_mul_f32 v9, v16, v17
    v_fmac_f32 v9, v18, v19
    v_fmac_f32 v9, v20, v21
    v_fmac_f32 v9, v22, v23               ; l
    s_waitcnt lgkmcnt(0)
    """)
    idx = lambda w, hi, t: T1R[6 * w + 3 * hi + t]
    for w in range(4):
        for t in range(3):
            a(f"v_add_f32 v{idx(w,0,t)}, v{idx(w,0,t)}, v{idx(w,1,t)}")
    for t in range(3):
        a(f"v_mul_f32 v{17+2*t}, v16, v{idx(0,0,t)}")
    for w in range(1, 4):
        for t in range(3):
            a(f"v_fmac_f32 v{17+2*t}, v{16+2*w}, v{idx(w,0,t)}")
    a(f"""
    v_mov_b32 v24, v17
    v_mov_b32 v25, v19
    v_mov_b32 v26, v21
    v_mov_b32 v27, {sTAG}
    v_mov_b32 v28, v8
    v_mov_b32 v29, v9
    v_mov_b32 v30, {sTAG}
    v_mov_b32 v31, {sTAG}
    buffer_store_dwordx4 v[24:27], v11, {WSR}, s52 offen sc1
    s_mov_b64 exec, s[12:13]
    buffer_store_dwordx4 v[28:31], v11, {WSR}, s53 offen sc1
    s_mov_b64 exec, s[4:5]
    L_t1_done:
    """)
    stamp(9, STAMPV_H)
    a(f"""
    s_cmp_eq_u32 {sROLE}, 3
    s_cbranch_scc1 L_t3
    s_cmp_eq_u32 {sROLE}, 4
    s_cbranch_scc1 L_t4
    s_cmp_eq_u32 {sROLE}, 2
    s_cbranch_scc0 L_hend
    """)
    a(f"""
    s_lshl_b32 s52, {sG}, 2
    s_add_u32 s52, s52, s3
    s_lshl_b32 s53, s52, 13
    s_add_u32 s53, s53, {WS_PO}
    s_lshl_b32 s54, s52, 7
    s_add_u32 s54, s54, {WS_PML}
    v_lshlrev_b32 v10, 4, v0
    v_lshlrev_b32 v11, 4, v4
    s_add_u32 s55, s53, 4096
    L_t2gate:
    """)
    spin_check()
    a(f"""
    buffer_load_dwordx4 v[48:51], v11, {WSR}, s54 offen sc1
    s_waitcnt vmcnt(0)
    v_cmp_ne_u32 s[78:79], {sTAG}, v50
    s_and_b32 s56, s78, 0xff
    s_bcnt1_i32_b32 s56, s56
    s_cmp_gt_u32 s56, {T2G}
    s_cbranch_scc1 L_t2gate
    """)
    for i in range(8): a(f"s_mov_b64 s[{80+2*i}:{81+2*i}], s[4:5]")
    a("L_t2poll:")
    stamp(14, STAMPV_H)
    spin_check()
    if SIM2:
        a(f"buffer_load_dwordx4 v[48:51], v11, {WSR}, s54 offen sc1")
        for i in range(8):
            a(f"buffer_load_dwordx4 v[{16+4*i}:{19+4*i}], v10, {WSR}, {'s53' if i < 4 else 's55'} offen offset:{1024*(i%4)} sc1")
        a(f"s_waitcnt vmcnt(8)\nv_xor_b32 v14, {sTAG}, v50")
        for i in range(8):
            a(f"s_waitcnt vmcnt({7-i})\nv_bitop3_b32 v14, v14, v{19+4*i}, {sTAG} bitop3:0xf6")
        a("v_cmp_ne_u32 vcc, 0, v14\ns_cbranch_vccnz L_t2poll")
    else:
        for i in range(8):
            lz = a.lab("L_z")
            a(f"s_mov_b64 exec, s[{80+2*i}:{81+2*i}]")
            if SKIPZ: a(f"s_cbranch_execz {lz}")
            a(f"buffer_load_dwordx4 v[{16+4*i}:{19+4*i}], v10, {WSR}, {'s53' if i < 4 else 's55'} offen offset:{1024*(i%4)} sc1")
            a(f"{lz}:")
        a(f"""
        s_mov_b64 exec, s[78:79]
        buffer_load_dwordx4 v[48:51], v11, {WSR}, s54 offen sc1
        s_mov_b64 exec, s[4:5]
        s_waitcnt vmcnt(0)
        v_cmp_ne_u32 s[78:79], {sTAG}, v50
        """)
        for i in range(8): a(f"v_cmp_ne_u32 s[{80+2*i}:{81+2*i}], {sTAG}, v{19+4*i}")
        a("s_or_b64 s[56:57], s[78:79], s[80:81]")
        for i in range(1, 8): a(f"s_or_b64 s[56:57], s[56:57], s[{80+2*i}:{81+2*i}]")
        a("s_cbranch_scc1 L_t2poll")
    stamp(10, STAMPV_H)
    a(f"""
    v_min_f32_dpp v52, v48, v48 row_ror:4 row_mask:0xf bank_mask:0xf
    v_min_f32_dpp v52, v52, v52 row_ror:2 row_mask:0xf bank_mask:0xf
    v_min_f32_dpp v52, v52, v52 row_ror:1 row_mask:0xf bank_mask:0xf
    v_sub_f32 v52, v52, v48
    v_exp_f32 v52, v52
    v_mul_f32 v53, v52, v49
    v_add_f32_dpp v53, v53, v53 row_ror:4 row_mask:0xf bank_mask:0xf
    v_add_f32_dpp v53, v53, v53 row_ror:2 row_mask:0xf bank_mask:0xf
    v_add_f32_dpp v53, v53, v53 row_ror:1 row_mask:0xf bank_mask:0xf
    v_rcp_f32 v53, v53
    v_mul_f32 v52, v52, v53
    """)
    for i in range(8): a(f"v_readlane_b32 s{80+i}, v52, {i}")
    a("s_mul_i32 s52, s3, 384\nv_lshl_add_u32 v11, v0, 1, s52")
    for t in range(3): a(f"v_mul_f32 v{54+t}, s80, v{16+t}")
    for i in range(1, 8):
        for t in range(3): a(f"v_fmac_f32 v{54+t}, s{80+i}, v{16+4*i+t}")
    a(f"""
    v_cvt_pk_bf16_f32 v54, v54, v55
    v_cvt_pk_bf16_f32 v56, v56, v56
    ds_write_b16 v11, v54 offset:{L_XV}
    ds_write_b16_d16_hi v11, v54 offset:{L_XV+128}
    ds_write_b16 v11, v56 offset:{L_XV+256}
    s_mul_i32 s52, {sG}, 2560
    s_lshl_b32 s53, {sK5}, 8
    s_add_u32 s52, s52, s53
    s_lshl_b32 s53, s3, 6
    s_add_u32 s52, s52, s53
    s_add_u32 s52, s52, {WS_AP}
    v_lshlrev_b32 v10, 4, v5
    s_waitcnt lgkmcnt(0)
    s_cmp_lg_u32 s14, 0
    s_cbranch_scc1 L_nb2
    s_barrier
    L_nb2:
    """)
    gemv(24, 16, 12)
    for i in range(4): a(f"v_min_u32 v{16+i}, -2, v{16+i}")
    a(f"""
    s_mov_b64 exec, s[6:7]
    buffer_store_dwordx4 v[16:19], v10, {WSR}, s52 offen sc1
    """)
    for r in range(1, RAP):
        a(f"s_add_u32 s52, s52, 20480\nbuffer_store_dwordx4 v[16:19], v10, {WSR}, s52 offen sc1")
    stamp(11, STAMPV_H)
    a("s_branch L_hend")

    def ap_poll(tag):
        rr = lambda i: 16 + 4 * i if i < 7 else 8
        a(f"s_sub_u32 s56, {sS}, 3\ns_min_u32 s56, s56, {RAP-1}\ns_mul_i32 s56, s56, 20480")
        for i in range(4): a(f"s_add_u32 s{52+i}, s56, {WS_AP + 5120*i}")
        for i in range(8): a(f"s_mov_b64 s[{80+2*i}:{81+2*i}], s[4:5]")
        if GATE3 == 1 and tag == 3:
            a(f"""
            s_lshl_b32 s56, s3, 10
            s_add_u32 s56, s56, {WS_PML}
            v_lshlrev_b32 v14, 4, v0
            L_gate3:
            """)
            spin_check()
            a(f"""
            s_sleep 4
            buffer_load_dword v15, v14, {WSR}, s56 offen offset:8 sc1
            s_waitcnt vmcnt(0)
            v_cmp_ne_u32 vcc, {sTAG}, v15
            s_cbranch_vccnz L_gate3
            """)
        if GATE3 == 2:
            a(f"""
            s_and_b32 s56, {sID}, 3
            s_mul_i32 s56, s56, 2560
            s_add_u32 s56, s56, s52
            s_add_u32 s57, s56, 10240
            L_gate{tag}:
            """)
            spin_check()
            a(f"""
            s_sleep 4
            buffer_load_dword v14, v13, {WSR}, s56 offen sc1
            buffer_load_dword v15, v13, {WSR}, s57 offen sc1
            s_waitcnt vmcnt(0)
            v_cmp_eq_u32 s[58:59], -1, v14
            v_cmp_eq_u32 vcc, -1, v15
            s_cmp_eq_u64 s[58:59], 0
            s_cbranch_scc1 {"L_lp3a" if (LP3 and tag == 3) else f"L_ap{tag}"}
            s_cbranch_vccnz L_gate{tag}
            """)
        if LP3 and tag == 3:
            a(f"""
            L_lp3a:
            v_min_u32 v14, 39, v0
            v_and_b32 v15, 7, v14
            v_mul_u32_u24 v15, 2560, v15
            v_lshrrev_b32 v14, 3, v14
            v_lshl_add_u32 v14, v14, 7, v15
            s_mul_i32 s56, s3, 640
            s_add_u32 s56, s56, s52
            L_lp3:
            """)
            spin_check()
            a(f"""
            buffer_load_dword v15, v14, {WSR}, s56 offen sc1
            buffer_load_dword v60, v14, {WSR}, s56 offen offset:64 sc1
            s_waitcnt vmcnt(0)
            v_max_u32 v15, v15, v60
            v_cmp_eq_u32 vcc, -1, v15
            s_cbranch_vccnz L_lp3
            """)
        a(f"L_ap{tag}:")
        stamp(14, STAMPV_H)
        spin_check()
        if SIM3:
            for i in range(8):
                a(f"buffer_load_dwordx4 v[{rr(i)}:{rr(i)+3}], v13, {WSR}, s{52+i//2} offen offset:{2560*(i%2)} sc1")
            a(f"""
            s_waitcnt vmcnt(5)
            v_max3_u32 v14, v{rr(0)}, v{rr(1)}, v{rr(2)}
            s_waitcnt vmcnt(3)
            v_max3_u32 v14, v14, v{rr(3)}, v{rr(4)}
            s_waitcnt vmcnt(1)
            v_max3_u32 v14, v14, v{rr(5)}, v{rr(6)}
            s_waitcnt vmcnt(0)
            v_max_u32 v14, v14, v{rr(7)}
            v_cmp_eq_u32 vcc, -1, v14
            s_cbranch_vccnz L_ap{tag}
            """)
        else:
            for i in range(8):
                lz = a.lab("L_z")
                a(f"s_mov_b64 exec, s[{80+2*i}:{81+2*i}]")
                if SKIPZ: a(f"s_cbranch_execz {lz}")
                a(f"buffer_load_dwordx4 v[{rr(i)}:{rr(i)+3}], v13, {WSR}, s{52+i//2} offen offset:{2560*(i%2)} sc1")
                a(f"{lz}:")
            a("s_mov_b64 exec, s[4:5]\ns_waitcnt vmcnt(0)")
            for i in range(8): a(f"v_cmp_eq_u32 s[{80+2*i}:{81+2*i}], -1, v{rr(i)}")
            a("s_or_b64 s[56:57], s[80:81], s[82:83]")
            for i in range(2, 8): a(f"s_or_b64 s[56:57], s[56:57], s[{80+2*i}:{81+2*i}]")
            a(f"s_cbranch_scc1 L_ap{tag}")
        stamp(15, STAMPV_H)
        for (x, y) in ((0, 1), (2, 3), (4, 5), (6, 7), (0, 2), (4, 6), (0, 4)):
            for k in (0, 2): a(f"v_pk_add_f32 v[{rr(x)+k}:{rr(x)+k+1}], v[{rr(x)+k}:{rr(x)+k+1}], v[{rr(y)+k}:{rr(y)+k+1}]")
        if FASTT:
            for k in (0, 2): a(f"v_pk_fma_f32 v[{16+k}:{17+k}], v[{48+k}:{49+k}], v[{16+k}:{17+k}], v[{44+k}:{45+k}]")
            return
        bf16_round2(16, 17); bf16_round2(18, 19)
        for k in (0, 2): a(f"v_pk_mul_f32 v[{16+k}:{17+k}], v[{48+k}:{49+k}], v[{16+k}:{17+k}]")
        bf16_round2(16, 17); bf16_round2(18, 19)
        for k in (0, 2): a(f"v_pk_add_f32 v[{16+k}:{17+k}], v[{44+k}:{45+k}], v[{16+k}:{17+k}]")
        bf16_round2(16, 17); bf16_round2(18, 19)

    a("L_t3:")
    ap_poll(3)
    stamp(10, STAMPV_H)
    a(f"""
    v_readfirstlane_b32 s58, v16
    v_cmp_gt_u32 vcc, 40, v0
    v_mov_b32 v26, 0
    """)
    for k in range(4):
        a(f"v_subrev_f32 v{20+k}, s58, v{16+k}")
    a("""
    v_add_f32 v24, v20, v21
    v_mul_f32 v25, v20, v20
    v_add_f32 v24, v24, v22
    v_fmac_f32 v25, v21, v21
    v_add_f32 v24, v24, v23
    v_fmac_f32 v25, v22, v22
    v_fmac_f32 v25, v23, v23
    v_cndmask_b32 v24, v26, v24, vcc
    v_cndmask_b32 v25, v26, v25, vcc
    """)
    reduce64([24, 25])
    a(f"""
    v_mul_f32 v26, 0x3bcccccd, v24        ; S1/160
    v_fma_f32 v25, -v26, v24, v25         ; M2 = S2 - S1^2/160
    v_add_f32 v24, s58, v26               ; wave mean
    s_lshl_b32 s52, s3, 3
    v_mov_b32 v27, s52
    s_mov_b64 exec, s[10:11]
    ds_write_b64 v27, v[24:25] offset:{L_STAT}
    s_mov_b64 exec, s[4:5]
    v_mov_b32 v27, {L_STAT}
    s_waitcnt lgkmcnt(0)
    s_cmp_lg_u32 s14, 0
    s_cbranch_scc1 L_nb3
    s_barrier
    L_nb3:
    ds_read_b128 v[28:31], v27
    ds_read_b128 v[32:35], v27 offset:16
    v_lshrrev_b32 v14, 1, v13
    s_waitcnt lgkmcnt(0)
    v_add_f32 v24, v28, v30
    v_add_f32 v25, v32, v34
    v_add_f32 v24, v24, v25
    v_mul_f32 v24, 0.25, v24              ; mean
    v_add_f32 v25, v29, v31
    v_add_f32 v26, v33, v35
    v_add_f32 v25, v25, v26               ; sum M2
    v_sub_f32 v28, v28, v24
    v_sub_f32 v30, v30, v24
    v_sub_f32 v32, v32, v24
    v_sub_f32 v34, v34, v24
    v_mul_f32 v26, v28, v28
    v_fmac_f32 v26, v30, v30
    v_fmac_f32 v26, v32, v32
    v_fmac_f32 v26, v34, v34
    v_mul_f32 v25, 0x3acccccd, v25        ; /640
    v_fmac_f32 v25, 0.25, v26             ; + 160/640 * sum (mean_w - mean)^2
    """.replace("0.25,", "0x3e800000,"))
    if FASTT:
        a("""
        v_add_f32 v25, 0x3727c5ac, v25
        v_rsq_f32 v26, v25
        v_sub_f32 v16, v16, v24
        v_sub_f32 v17, v17, v24
        v_sub_f32 v18, v18, v24
        v_sub_f32 v19, v19, v24
        v_mov_b32 v27, v26
        v_pk_mul_f32 v[20:21], v[56:57], v[26:27]
        v_pk_mul_f32 v[22:23], v[58:59], v[26:27]
        v_pk_fma_f32 v[20:21], v[16:17], v[20:21], v[52:53]
        v_pk_fma_f32 v[22:23], v[18:19], v[22:23], v[54:55]
        """)
    else:
        bf16_round2(24, 25)
        a("v_add_f32 v25, 0x3727c5ac, v25")
        bf16_round1(25)
        a("v_sqrt_f32 v25, v25")
        bf16_round1(25)
        a("v_rcp_f32 v26, v25")
        for k in range(4): a(f"v_sub_f32 v{16+k}, v{16+k}, v24")
        bf16_round2(16, 17); bf16_round2(18, 19)
        for k in range(4): div_rn(20 + k, 16 + k, 25, 26, 28 + k)
        bf16_round2(20, 21); bf16_round2(22, 23)
        for k in range(4): a(f"v_mul_f32 v{20+k}, v{20+k}, v{56+k}")
        bf16_round2(20, 21); bf16_round2(22, 23)
        for k in range(4): a(f"v_add_f32 v{20+k}, v{20+k}, v{52+k}")
    a(f"""
    v_cvt_pk_bf16_f32 v20, v20, v21
    v_cvt_pk_bf16_f32 v21, v22, v23
    s_mov_b64 exec, s[8:9]
    ds_write_b64 v14, v[20:21] offset:{L_XV}
    s_mov_b64 exec, s[4:5]
    s_lshl_b32 s52, {sID}, 7
    s_lshl_b32 s53, s3, 5
    s_add_u32 s52, s52, s53
    s_add_u32 s52, s52, {WS_GU}
    v_lshlrev_b32 v10, 3, v5
    v_and_b32 v8, 3, v0
    v_cmp_eq_u32 s[58:59], 1, v8
    v_cmp_eq_u32 s[60:61], 2, v8
    v_cmp_eq_u32 s[62:63], 3, v8
    s_waitcnt lgkmcnt(0)
    s_cmp_lg_u32 s14, 0
    s_cbranch_scc1 L_nb4
    s_barrier
    L_nb4:
    """)
    gemv(20, 16, 12)
    a(f"""
    s_cmp_ge_u32 {sID}, 24
    s_cbranch_scc1 L_t3up
    v_cndmask_b32 v16, v16, v17, s[58:59]
    v_cndmask_b32 v16, v16, v18, s[60:61]
    v_cndmask_b32 v16, v16, v19, s[62:63]
    """)
    if not FASTT: bf16_round1(16)
    import struct
    f2u = lambda x: struct.unpack('<I', struct.pack('<f', x))[0]
    c1 = -2.0 * 0.7978845608028654 * 1.4426950408889634
    a(f"""
    v_mul_f32 v17, v16, v16
    v_mov_b32 v18, 0x{f2u(c1):08x}
    v_fmac_f32 v18, 0x{f2u(c1*0.044715):08x}, v17
    v_mul_f32 v17, v16, v18
    v_exp_f32 v17, v17
    v_add_f32 v17, 1.0, v17
    v_rcp_f32 v17, v17
    v_mul_f32 v16, v16, v17
    v_mov_b32_dpp v17, v16 quad_perm:[1,1,1,1] row_mask:0xf bank_mask:0xf
    v_mov_b32_dpp v18, v16 quad_perm:[2,2,2,2] row_mask:0xf bank_mask:0xf
    v_mov_b32_dpp v19, v16 quad_perm:[3,3,3,3] row_mask:0xf bank_mask:0xf
    L_t3up:
    v_cvt_pk_bf16_f32 v16, v16, v17
    v_cvt_pk_bf16_f32 v17, v18, v19
    v_min_u32 v16, -2, v16
    v_min_u32 v17, -2, v17
    s_mov_b64 exec, s[6:7]
    buffer_store_dwordx2 v[16:17], v10, {WSR}, s52 offen sc1
    """)
    stamp(11, STAMPV_H)
    a("s_branch L_hend")
    a("L_t4:")
    ap_poll(4)
    stamp(10, STAMPV_H)
    for k in range(4): a(f"v_mov_b32 v{44+k}, v{16+k}")
    srd(44, sOUT, 1280)
    a(f"""
    s_lshl_b32 s52, s3, 10
    v_lshl_add_u32 v10, v0, 4, s52
    s_mov_b32 s53, {WS_GU}
    s_mov_b32 s54, {WS_GU + 3072}
    v_lshrrev_b32 v14, 1, v13
    s_cmp_eq_u32 s3, 3
    s_cbranch_scc1 L_t4b
    L_gupoll:
    """)
    stamp(16, STAMPV_H)
    spin_check()
    a(f"""
    buffer_load_dwordx4 v[16:19], v10, {WSR}, s53 offen sc1
    buffer_load_dwordx4 v[20:23], v10, {WSR}, s54 offen sc1
    s_waitcnt vmcnt(0)
    v_max3_u32 v24, v16, v18, v20
    v_max_u32 v24, v24, v22
    v_cmp_eq_u32 vcc, -1, v24
    s_cbranch_vccnz L_gupoll
    """)
    stamp(11, STAMPV_H)
    for k in range(4):
        unpack2(16 + k, 24, 25); unpack2(20 + k, 26, 27)
        a(f"v_pk_mul_f32 v[24:25], v[24:25], v[26:27]\nv_cvt_pk_bf16_f32 v{16+k}, v24, v25")
    a(f"""
    ds_write_b128 v10, v[16:19] offset:{L_XV}
    s_waitcnt lgkmcnt(0)
    L_t4b:
    s_cmp_lg_u32 s14, 0
    s_cbranch_scc1 L_nb5
    s_barrier
    L_nb5:
    """)
    gemv(48, 16, 12, tmp=20, ntmp=6)
    if FASTT:
        for k in (0, 2): a(f"v_pk_fma_f32 v[{16+k}:{17+k}], v[{52+k}:{53+k}], v[{16+k}:{17+k}], v[{44+k}:{45+k}]")
    else:
        bf16_round2(16, 17); bf16_round2(18, 19)
        for k in range(4): a(f"v_mul_f32 v{16+k}, v{52+k}, v{16+k}")
        bf16_round2(16, 17); bf16_round2(18, 19)
        for k in range(4): a(f"v_add_f32 v{16+k}, v{44+k}, v{16+k}")
    if PERT:
        kind, val = PERT
        if kind == "mul":
            for k in range(4): a(f"v_mul_f32 v{16+k}, 0x{f2u(val):08x}, v{16+k}")
        elif kind == "add1":
            a(f"s_cmp_lg_u32 s3, 0\ns_cbranch_scc1 L_np\nv_mov_b32 v20, 0\nv_mov_b32 v21, 0x{f2u(val):08x}\nv_cmp_gt_u32 vcc, 16, v0\nv_cndmask_b32 v20, v20, v21, vcc\nv_add_f32 v16, v16, v20\nL_np:")
        elif kind == "addall":
            for k in range(4): a(f"v_add_f32 v{16+k}, 0x{f2u(val):08x}, v{16+k}")
    a(f"""
    v_cvt_pk_bf16_f32 v16, v16, v17
    v_cvt_pk_bf16_f32 v17, v18, v19
    s_mov_b64 exec, s[6:7]
    buffer_store_dwordx2 v[16:17], v14, {CR}, 0 offen
    """)
    dbgstamp(4)
    a(f"""
    s_or_b32 s52, {sID}, s3
    s_cmp_lg_u32 s52, 0
    s_cbranch_scc1 L_hend
    s_add_u32 s52, {sE}, 1
    v_mov_b32 v18, s52
    v_mov_b32 v19, 0
    s_mov_b64 exec, s[12:13]
    buffer_store_dword v18, v19, {WSR}, 0 offen
    L_hend:
    """)
    a("s_cmp_lg_u32 s14, 0\ns_cbranch_scc1 L_dry_done")
    stamp(12, STAMPV_H)
    stamp_dump(STAMPV_H)
    a("s_endpgm")

    RING = 56
    D0, D1, ACC, Q = 20, 24, 28, 40
    sW, sOFF, sIDX, sEND, sV_ = "s52", "s53", "s54", "s55", "s56"
    a("L_stream:")
    if prof: a(f"v_mov_b32 v{STAMPV_S}, 0\nv_mov_b32 v53, 0\nv_mov_b32 v54, 0\ns_mov_b32 s63, 0")
    stamp(0, STAMPV_S)
    a(f"""
    s_sub_u32 {sW}, s3, 4
    v_bfe_u32 v1, v0, 1, 3
    v_mul_u32_u24 v1, 384, v1
    v_and_b32 v2, 1, v0
    v_lshl_add_u32 v1, v2, 6, v1
    v_lshrrev_b32 v12, 4, v0
    v_lshl_add_u32 v1, v12, 4, v1
    v_add_u32 v2, 3072, v1
    v_lshrrev_b32 v3, 3, v0
    {"v_bfe_u32 v14, v0, 3, 1" if 'r8' in XP else ""}
    {"v_lshl_add_u32 v3, v14, 2, v12" if 'r8' in XP else ""}
    v_mul_u32_u24 v3, 384, v3
    v_and_b32 v13, 7, v0
    v_lshl_add_u32 v3, v13, 4, v3
    v_add_u32 v4, 3072, v3
    s_mul_i32 s57, {sH}, {HEADBYTES}
    s_mul_hi_u32 s58, {sH}, {HEADBYTES}
    s_mul_i32 s64, {sH}, {GPH}
    s_add_u32 s64, s64, {sS}
    s_lshl_b32 s64, s64, 2
    s_add_u32 s64, s64, {sW}
    s_and_b32 s64, s64, 2047
    s_mul_i32 {sOFF}, s64, 6144
    s_mov_b32 s38, {HEADBYTES}
    s_mov_b32 s39, 0x20000
    s_mov_b32 s42, {HEADBYTES}
    s_mov_b32 s43, 0x20000
    s_waitcnt lgkmcnt(0)
    s_add_u32 s36, s{sK}, s57
    s_addc_u32 s37, s{sK+1}, s58
    s_add_u32 s40, s{sV}, s57
    s_addc_u32 s41, s{sV+1}, s58
    """)
    if dbgt:
        a("s_cmp_lg_u32 s3, 4\ns_cbranch_scc1 L_nd0")
        dbgstamp(0, True); dbgstamp(1)
        a("L_nd0:")
    if EARLY: a("s_cmp_eq_u32 s62, 0\ns_cbranch_scc1 L_nob0\ns_barrier\nL_nob0:")
    else: a("s_barrier")

    def kloads(slot):
        r0 = RING + 48 * slot
        for j in range(6):
            a(f"buffer_load_dwordx4 v[{r0+4*j}:{r0+4*j+3}], v{1+j//3}, {AR}, {sOFF} offen offset:{128*(j%3)} nt")

    def vloads(slot):
        r0 = RING + 48 * slot + 24
        for j in range(6):
            a(f"buffer_load_dwordx4 v[{r0+4*j}:{r0+4*j+3}], v{3+j//3}, {BR}, {sOFF} offen offset:{128*(j%3)} nt")
    grp = 0
    def pace():
        nonlocal grp
        if 0 < grp <= SLOW: a("s_waitcnt vmcnt(0)")
        elif 6 * grp > PACE: a(f"s_waitcnt vmcnt({PACE})")
        grp += 1
    if DLY: a(f"s_sleep {DLY}")
    def flag_wait(tag):
        a(f"v_mov_b32 v17, {L_FL0}\nL_fw{tag}:")
        spin_check()
        a(f"""
        s_sleep 1
        ds_read_b128 v[20:23], v17
        s_waitcnt lgkmcnt(0)
        v_and_b32 v20, v20, v21
        v_and_b32 v22, v22, v23
        v_and_b32 v20, v20, v22
        v_cmp_eq_u32 vcc, 0, v20
        s_cbranch_vccnz L_fw{tag}
        """)
    for s in range(R):
        if s == HOLD:
            a("s_cmp_eq_u32 s62, 0\ns_cbranch_scc1 L_nohold" if HOLDM else "s_cmp_lg_u32 s62, 2\ns_cbranch_scc1 L_nohold")
            flag_wait(0)
            a("L_nohold:")
        pace(); kloads(s); pace(); vloads(s)
        if EARLY and s == 0: a("s_cmp_lg_u32 s62, 0\ns_cbranch_scc1 L_nob1\ns_barrier\nL_nob1:")
        stamp(8 + s, STAMPV_S)
        a(f"s_add_u32 s64, s64, 32\ns_and_b32 s64, s64, 2047\ns_mul_i32 {sOFF}, s64, 6144")
    a(f"""
    s_mul_i32 s59, {sW}, {NL*12288}
    s_add_u32 s59, s59, {L_STG}
    s_mov_b32 {sIDX}, {L_RB + 4*NPRE}
    """)
    if NL: flag_wait(1)
    for n in range(NL):
        for j in range(12):
            if j % 6 == 0: pace()
            off = 128 * (j % 3)
            a(f"s_add_u32 m0, s59, {n*12288 + j*1024 - off}")
            if j < 6: a(f"buffer_load_dwordx4 v{1+j//3}, {AR}, {sOFF} offen offset:{off} nt lds")
            else: a(f"buffer_load_dwordx4 v{3+(j-6)//3}, {BR}, {sOFF} offen offset:{off} nt lds")
        stamp(12 + n, STAMPV_S)
        a(f"s_add_u32 s64, s64, 32\ns_and_b32 s64, s64, 2047\ns_mul_i32 {sOFF}, s64, 6144")
    stamp(1, STAMPV_S)
    a(f"""
    v_and_b32 v14, 1, v0
    v_lshlrev_b32 v14, 4, v14
    v_mov_b32 v15, 0xffff
    v_lshlrev_b32 v14, v14, v15           ; 0xffff << 16*(l&1)
    v_lshrrev_b32 v13, 1, v13             ; (l&7)>>1
    v_mov_b32 v15, 0
    """)
    for r in range(4):
        a(f"v_cmp_eq_u32 vcc, {r}, v13\nv_cndmask_b32 v{5+r}, v15, v14, vcc")
    a(f"""
    v_mov_b32 v9, 0xff800000
    v_mov_b32 v10, 0x7f800000
    v_mov_b32 v11, 0
    """)
    for i in range(12): a(f"v_mov_b32 v{ACC+i}, 0")
    a(f"""
    s_lshl_b32 s57, {sW}, 2
    v_mov_b32 v18, s57
    s_mov_b32 s60, 1
    s_mov_b32 {sEND}, 0
    v_mov_b32 v17, {sIDX}
    v_bfe_u32 v13, v0, 3, 1
    v_lshlrev_b32 v13, 6, v13
    v_lshl_add_u32 v13, v12, 4, v13
    ds_read_b32 v16, v17
    L_qwait:
    """)
    spin_check()
    a(f"""
    s_sleep 1
    ds_read_b128 v[{Q}:{Q+3}], v13 offset:{L_QV}
    ds_read_b128 v[{Q+4}:{Q+7}], v13 offset:{L_QV+128}
    ds_read_b128 v[{Q+8}:{Q+11}], v13 offset:{L_QV+256}
    s_waitcnt lgkmcnt(0)
    v_max3_u32 v14, v{Q}, v{Q+1}, v{Q+2}
    v_max3_u32 v15, v{Q+3}, v{Q+4}, v{Q+5}
    v_max3_u32 v14, v14, v{Q+6}, v{Q+7}
    v_max3_u32 v15, v15, v{Q+8}, v{Q+9}
    v_max3_u32 v14, v14, v{Q+10}, v{Q+11}
    v_max_u32 v14, v14, v15
    v_cmp_eq_u32 vcc, -1, v14
    s_cbranch_vccnz L_qwait
    """)
    stamp(2, STAMPV_S)
    W = 12 * (D - 1) + 6

    def qk(slot):
        if 'nomf' in XP: return
        k0 = RING + 48 * slot
        for t in range(3):
            for u in range(2):
                d = D0 if u == 0 else D1
                c = "0" if t == 0 else f"v[{d}:{d+3}]"
                kr = k0 + 12 * u + 4 * t
                a(f"v_mfma_f32_16x16x32_bf16 v[{d}:{d+3}], v[{kr}:{kr+3}], v[{Q+4*t}:{Q+4*t+3}], {c}")

    def softmax():
        if 'nosm' in XP: return
        nr = a.lab("L_nr")
        a(f"""
        v_add_f32_dpp v12, v{D0+1}, v{D0} row_ror:8 row_mask:0xf bank_mask:0x3
        v_add_f32_dpp v13, v{D1+1}, v{D1} row_ror:8 row_mask:0xf bank_mask:0x3
        v_add_f32_dpp v12, v{D0+2}, v{D0+3} row_ror:8 row_mask:0xf bank_mask:0xc
        v_add_f32_dpp v13, v{D1+2}, v{D1+3} row_ror:8 row_mask:0xf bank_mask:0xc
        """)
        bf16_round2(12, 13)
        a(f"v_mul_f32 v12, 0x{SCALE:08x}, v12\nv_mul_f32 v13, 0x{SCALE:08x}, v13")
        bf16_round2(12, 13)
        a(f"""
        v_max_f32 v15, v12, v13
        v_cmp_gt_f32 vcc, v15, v9
        s_cbranch_vccz {nr}
        s_call_b64 s[66:67], L_rare
        {nr}:
        v_fmamk_f32 v12, v12, 0x{LOG2E:08x}, v10
        v_fmamk_f32 v13, v13, 0x{LOG2E:08x}, v10
        v_exp_f32 v12, v12
        v_exp_f32 v13, v13
        v_add_f32 v11, v11, v12
        v_cvt_pk_bf16_f32 v14, v12, v12
        v_cvt_pk_bf16_f32 v15, v13, v13
        v_add_f32 v11, v11, v13
        """)
        for r in range(4): a(f"v_and_b32 v{D0+r}, v14, v{5+r}")
        for r in range(4): a(f"v_and_b32 v{D1+r}, v15, v{5+r}")

    def pv(slot):
        if 'nomf' in XP: return
        v0 = RING + 48 * slot + 24
        for u in range(2):
            for t in range(3):
                d = D0 if u == 0 else D1
                vr = v0 + 12 * u + 4 * t
                a(f"v_mfma_f32_16x16x32_bf16 v[{ACC+4*t}:{ACC+4*t+3}], v[{d}:{d+3}], v[{vr}:{vr+3}], v[{ACC+4*t}:{ACC+4*t+3}]")

    def prog_stamp():
        if prof == 1:
            pl = a.lab("L_pg")
            a(f"""
            s_and_b32 m0, s63, 63
            s_cmp_ge_u32 s63, 64
            s_cbranch_scc1 {pl}a
            v_writelane_b32 v53, s98, m0
            s_branch {pl}b
            {pl}a:
            v_writelane_b32 v54, s98, m0
            {pl}b:
            s_add_u32 s63, s63, 1
            """)

    def rb_next(s):
        a(f"""
        v_readfirstlane_b32 {sV_}, v16
        s_cmp_eq_u32 {sV_}, -1
        s_cbranch_scc1 L_rbw{s}
        L_rbok{s}:
        s_add_u32 s57, {sV_}, {sW}
        s_mul_i32 s57, s57, 6144
        s_cmp_eq_u32 {sV_}, {END}
        s_cselect_b32 {sOFF}, 0, s57
        s_cselect_b32 s38, 0, s38
        s_cselect_b32 s42, 0, s42
        s_cselect_b32 s57, 0, 4
        s_addc_u32 {sEND}, {sEND}, 0
        s_add_u32 {sIDX}, {sIDX}, s57
        v_mov_b32 v17, {sIDX}
        """)

    a("L_loop:")
    for s in range(D):
        if H3:
            assert D == 2
            a("s_waitcnt vmcnt(12)")
            qk(s)
            if prof == 1: a("s_memrealtime s[98:99]")
            if s == 0: a("s_cmp_lg_u32 s60, 0\ns_cbranch_scc1 L_skipv")
            vloads(s ^ 1)
            if s == 0: a("L_skipv:")
            softmax()
            a("s_waitcnt vmcnt(12)")
            pv(s)
            a(f"s_cmp_lg_u32 {sEND}, 0\ns_cbranch_scc1 L_sdone\ns_waitcnt lgkmcnt(0)")
            prog_stamp()
            rb_next(s)
            kloads(s)
            a("ds_read_b32 v16, v17\nds_write_b32 v18, v17")
            continue
        a(f"s_waitcnt vmcnt({W})")
        qk(s)
        if prof == 1: a("s_memrealtime s[98:99]")
        a("s_waitcnt lgkmcnt(0)")
        prog_stamp()
        rb_next(s)
        if not LATEK: kloads(s)
        a("ds_read_b32 v16, v17\nds_write_b32 v18, v17")
        softmax()
        a(f"s_waitcnt vmcnt({W-6 if LATEK else W})")
        pv(s)
        a(f"s_cmp_eq_u32 {sEND}, {D}\ns_cbranch_scc1 L_sdone")
        if LATEK: kloads(s)
        vloads(s)
    a("s_cmp_eq_u32 s60, 0\ns_cbranch_scc1 L_loop")
    a(f"s_waitcnt vmcnt({18 if H3 else 12*D})")
    for s in range(D, 3):
        qk(s); softmax(); pv(s)
    a(f"""
    s_mov_b32 s60, {NL}
    v_lshlrev_b32 v52, 4, v0
    v_add_u32 v52, s59, v52
    L_det:
    """)
    qk(3); softmax(); pv(3)
    if NL:
        a("s_cmp_eq_u32 s60, 0\ns_cbranch_scc1 L_detx")
        for j in range(12):
            a(f"ds_read_b128 v[{RING+144+4*j}:{RING+144+4*j+3}], v52 offset:{1024*j}")
        a(f"""
        v_add_u32 v52, 12288, v52
        s_sub_u32 s60, s60, 1
        s_waitcnt lgkmcnt(0)
        s_branch L_det
        L_detx:
        v_mov_b32 v52, 1
        ds_write_b32 v18, v52 offset:{L_FREE}
        """)
    a("s_branch L_loop")
    for s in range(D):
        if JIT: a(f"L_rbw{s}:\nv_add_u32 v14, 4, v17\nds_write_b32 v18, v14\nL_rbv{s}:")
        else: a(f"L_rbw{s}:\nL_rbv{s}:")
        spin_check()
        a(f"""
        ds_read_b32 v16, v17
        s_waitcnt lgkmcnt(0)
        v_readfirstlane_b32 {sV_}, v16
        s_cmp_eq_u32 {sV_}, -1
        s_cbranch_scc1 L_rbv{s}
        s_branch L_rbok{s}
        """)
    a(f"""
    L_rare:
    v_max_f32_dpp v15, v15, v15 row_ror:8 row_mask:0xf bank_mask:0xf
    v_max_f32_dpp v15, v15, v15 row_bcast:15 row_mask:0xa bank_mask:0xf
    v_max_f32_dpp v15, v15, v15 row_bcast:31 row_mask:0xc bank_mask:0xf
    v_readlane_b32 s57, v15, 63
    v_mov_b32 v9, s57
    v_mul_f32 v15, 0x{0x80000000 | LOG2E:08x}, v9
    v_sub_f32 v14, v15, v10
    v_exp_f32 v14, v14
    v_mov_b32 v10, v15
    v_mul_f32 v11, v11, v14
    """)
    for i in range(12): a(f"v_mul_f32 v{ACC+i}, v{ACC+i}, v14")
    a("s_setpc_b64 s[66:67]")
    a("L_sdone:")
    stamp(3, STAMPV_S)
    if dbgt:
        a("s_cmp_lg_u32 s3, 4\ns_cbranch_scc1 L_nd1")
        dbgstamp(2, True); dbgstamp(3)
        a("L_nd1:")
    a(f"""
    v_add_f32_dpp v11, v11, v11 row_ror:8 row_mask:0xf bank_mask:0xf
    v_and_b32 v12, 7, v0
    v_lshlrev_b32 v12, 5, v12
    v_add_f32_dpp v11, v11, v11 row_bcast:15 row_mask:0xa bank_mask:0xf
    v_bfe_u32 v13, v0, 4, 1
    v_lshl_add_u32 v12, v13, 4, v12
    v_add_f32_dpp v11, v11, v11 row_bcast:31 row_mask:0xc bank_mask:0xf
    v_lshrrev_b32 v13, 5, v0
    v_mul_u32_u24 v13, 768, v13
    s_mul_i32 s57, {sW}, 1536
    v_add3_u32 v12, v12, v13, s57
    s_lshl_b32 s57, {sW}, 3
    v_mov_b32 v13, s57
    s_mov_b32 exec_lo, 0x00ff00ff
    s_mov_b32 exec_hi, 0xff00ff00
    ds_write_b128 v12, v[{ACC}:{ACC+3}] offset:{L_PART}
    ds_write_b128 v12, v[{ACC+4}:{ACC+7}] offset:{L_PART+256}
    ds_write_b128 v12, v[{ACC+8}:{ACC+11}] offset:{L_PART+512}
    s_mov_b32 exec_lo, 0
    s_mov_b32 exec_hi, 0x80000000
    ds_write_b64 v13, v[10:11] offset:{L_ML}
    s_waitcnt lgkmcnt(0)
    s_barrier
    """)
    stamp_dump(STAMPV_S)
    if prof:
        a(f"""
        v_add_u32 v1, 0x80000, v1
        global_store_dword v1, v53, s[{sWS}:{sWS+1}]
        v_add_u32 v1, 0x80000, v1
        global_store_dword v1, v54, s[{sWS}:{sWS+1}]
        s_waitcnt vmcnt(0)
        """)
    a(f"""
    s_endpgm
    L_fail:
    s_mov_b64 exec, 1
    s_lshl_b32 s52, s2, 3
    s_add_u32 s52, s52, s3
    s_or_b32 s52, s52, 0xdead0000
    v_mov_b32 v1, 0
    v_mov_b32 v2, s52
    global_store_dword v1, v2, s[{sDBG}:{sDBG+1}]
    L_exit:
    s_endpgm
    """)

    body = pad(a.L)
    hdr = open(os.path.join(os.path.dirname(os.path.abspath(__file__)), "..", "cdna_kernels", NAME + ".s.ref")).read().split("\n")
    hdr = [l for l in hdr if l.startswith(";") and "@launch" not in l and "Override launch" not in l and "grid=ceil" not in l]
    out = hdr + [f"; @launch grid=(256,1,1) block=(512,1,1) lds={LDS_BYTES}",
                 '.amdgcn_target "amdgcn-amd-amdhsa--gfx950"', ".text", f".globl {NAME}_kernel", ".p2align 8",
                 f".type {NAME}_kernel,@function", f"{NAME}_kernel:"] + body + [
        '.section .rodata,"a"', ".p2align 6", f".amdhsa_kernel {NAME}_kernel",
        "  .amdhsa_next_free_vgpr 256", "  .amdhsa_next_free_sgpr 102", "  .amdhsa_accum_offset 256",
        "  .amdhsa_group_segment_fixed_size 0", "  .amdhsa_kernarg_size 112", "  .amdhsa_user_sgpr_count 2",
        "  .amdhsa_user_sgpr_kernarg_segment_ptr 1", "  .amdhsa_system_sgpr_workgroup_id_x 1",
        "  .amdhsa_float_denorm_mode_32 3", ".end_amdhsa_kernel"]
    return "\n".join(out) + "\n"


if __name__ == "__main__":
    outp = sys.argv[1]
    kw = eval("dict(" + (sys.argv[2] if len(sys.argv) > 2 else "") + ")")
    open(outp, "w").write(gen(**kw))
```

```python
import sys, os
sys.path.insert(0, os.path.dirname(os.path.abspath(__file__)))
from asmlib import Asm, pad
NAME = "adaLN_cond__mha_block_cached__glu_gated_geglu__decode"
def gen(g1=5, g2=5, order=0):
    a = Asm()
    a(f"""
    s_cmp_ge_u32 s2, 256
    s_cbranch_scc1 L_done
    s_load_dwordx4 s[4:7], s[0:1], 8
    s_load_dwordx2 s[8:9], s[0:1], 104
    s_memrealtime s[20:21]
    v_lshrrev_b32 v1, 6, v0
    v_and_b32 v0, 63, v0
    v_readfirstlane_b32 s3, v1
    s_mul_i32 s55, s2, 5462
    s_lshr_b32 s55, s55, 16
    s_mul_i32 s56, s55, 12
    s_sub_u32 s53, s2, s56             ; j
    s_lshl_b32 s50, s55, 11
    s_cmp_eq_u32 s55, 21
    s_mov_b32 s51, 512
    s_cselect_b32 s51, 170, s51
    s_cselect_b32 s52, 4, 12
    s_mul_i32 s54, s55, {g1}
    s_sub_u32 s56, s2, 16
    s_mul_i32 s55, s56, 2731
    s_lshr_b32 s55, s55, 16            ; u = (wg-16)/24
    s_mul_i32 s57, s55, 24
    s_sub_u32 s63, s56, s57
    s_add_u32 s60, s55, 22
    s_lshl_b32 s60, s60, 11
    s_mov_b32 s61, 512
    s_mov_b32 s62, 24
    s_add_u32 s64, s55, 1
    s_mul_i32 s64, s64, {g2}
    s_cmp_lt_u32 s2, 16
    s_cbranch_scc0 L_p2
    s_mov_b32 s60, {21*2048+680}
    s_mov_b32 s61, 342
    s_mov_b32 s62, 16
    s_mov_b32 s63, s2
    s_mov_b32 s64, 0
    L_p2:
    """)
    if order:
        for i in range(5): a(f"s_mov_b32 s70, s{50+i}\ns_mov_b32 s{50+i}, s{60+i}\ns_mov_b32 s{60+i}, s70")
    a(f"""
    s_waitcnt lgkmcnt(0)
    s_mov_b32 s12, s4
    s_mov_b32 s13, s5
    s_mov_b32 s14, 402653184
    s_mov_b32 s15, 0x20000
    s_mov_b32 s16, s6
    s_mov_b32 s17, s7
    s_mov_b32 s18, 402653184
    s_mov_b32 s19, 0x20000
    v_bfe_u32 v4, v0, 1, 3
    v_mul_u32_u24 v4, 384, v4
    v_and_b32 v5, 1, v0
    v_lshl_add_u32 v4, v5, 6, v4
    v_lshrrev_b32 v5, 4, v0
    v_lshl_add_u32 v4, v5, 4, v4
    v_add_u32 v5, 3072, v4
    v_lshrrev_b32 v2, 3, v0
    v_mul_u32_u24 v2, 384, v2
    v_and_b32 v3, 7, v0
    v_lshl_add_u32 v2, v3, 4, v2
    v_add_u32 v3, 3072, v2
    v_mov_b32 v6, 0
    v_mov_b32 v7, 0
    s_mov_b32 s40, 0
    s_mov_b32 s45, 0
    s_mov_b32 s46, 0
    """)
    def nxt():
        l = a.lab("L_n")
        a(f"""
        s_cmp_lt_u32 s53, s51
        s_cbranch_scc1 {l}
        s_cmp_lg_u32 s45, 0
        s_cbranch_scc1 {l}e
        s_mov_b32 s45, 1
        s_mov_b32 s50, s60
        s_mov_b32 s51, s61
        s_mov_b32 s52, s62
        s_mov_b32 s53, s63
        s_mov_b32 s54, s64
        s_branch {l}
        {l}e:
        s_mov_b32 s14, 0
        s_mov_b32 s18, 0
        s_add_u32 s46, s46, 1
        {l}:
        s_add_u32 s22, s53, s54
        s_cmp_ge_u32 s22, s51
        s_cselect_b32 s23, s51, 0
        s_sub_u32 s22, s22, s23
        s_lshl_b32 s22, s22, 2
        s_add_u32 s22, s22, s50
        s_add_u32 s22, s22, s3
        s_mul_i32 s22, s22, 6144
        s_add_u32 s53, s53, s52
        """)
    def loads(slot):
        r0 = 24 + 48 * slot
        for j in range(6): a(f"buffer_load_dwordx4 v[{r0+4*j}:{r0+4*j+3}], v{4+j//3}, s[12:15], s22 offen offset:{128*(j%3)} nt")
        for j in range(6): a(f"buffer_load_dwordx4 v[{r0+24+4*j}:{r0+24+4*j+3}], v{2+j//3}, s[16:19], s22 offen offset:{128*(j%3)} nt")
    for s in range(2): nxt(); loads(s)
    a("L_loop:")
    for s in range(2):
        l = a.lab("L_p")
        a(f"""
        s_waitcnt vmcnt(12)
        s_memrealtime s[42:43]
        s_and_b32 m0, s40, 63
        s_cmp_ge_u32 s40, 64
        s_waitcnt lgkmcnt(0)
        s_cbranch_scc1 {l}a
        v_writelane_b32 v6, s42, m0
        s_branch {l}b
        {l}a:
        v_writelane_b32 v7, s42, m0
        {l}b:
        s_add_u32 s40, s40, 1
        """)
        nxt()
        a("s_cmp_eq_u32 s46, 2\ns_cbranch_scc1 L_fin")
        loads(s)
    a(f"""
    s_branch L_loop
    L_fin:
    s_memrealtime s[24:25]
    s_lshl_b32 s26, s2, 2
    s_add_u32 s26, s26, s3
    s_lshl_b32 s26, s26, 5
    s_add_u32 s8, s8, 0x40000000
    s_addc_u32 s9, s9, 0
    s_add_u32 s8, s8, s26
    s_addc_u32 s9, s9, 0
    s_waitcnt lgkmcnt(0)
    v_mov_b32 v20, s20
    v_mov_b32 v21, s21
    v_mov_b32 v22, s24
    v_mov_b32 v23, s25
    v_mov_b32 v16, 0
    s_lshl_b32 s27, s26, 4
    s_sub_u32 s27, s27, s26
    s_add_u32 s27, s27, 0x100000
    v_lshlrev_b32 v17, 2, v0
    v_add_u32 v17, s27, v17
    global_store_dword v17, v6, s[8:9]
    global_store_dword v17, v7, s[8:9] offset:256
    s_mov_b64 exec, 1
    global_store_dwordx4 v16, v[20:23], s[8:9]
    s_waitcnt vmcnt(0)
    L_done:
    s_endpgm
    """)
    body = pad(a.L)
    out = [f"; @launch grid=(256,1,1) block=(256,1,1) lds=90000", '.amdgcn_target "amdgcn-amd-amdhsa--gfx950"', ".text", f".globl {NAME}_kernel", ".p2align 8",
           f".type {NAME}_kernel,@function", f"{NAME}_kernel:"] + body + ['.section .rodata,"a"', ".p2align 6", f".amdhsa_kernel {NAME}_kernel",
        "  .amdhsa_next_free_vgpr 120", "  .amdhsa_next_free_sgpr 80", "  .amdhsa_accum_offset 120", "  .amdhsa_group_segment_fixed_size 0", "  .amdhsa_kernarg_size 112",
        "  .amdhsa_user_sgpr_count 2", "  .amdhsa_user_sgpr_kernarg_segment_ptr 1", "  .amdhsa_system_sgpr_workgroup_id_x 1", ".end_amdhsa_kernel"]
    return "\n".join(out) + "\n"
if __name__ == "__main__":
    os.makedirs("bw", exist_ok=True)
    names = []
    for c in eval(sys.argv[1]):
        nm = "ph2_" + "_".join(f"{k}{v}" for k, v in c.items()) + ".s"
        open(f"bw/{nm}", "w").write(gen(**c)); names.append(f"dev/bw/{nm}")
    print(" ".join(names))
```
